```python
import torch

def _softmax(x, axis=-1):
    return torch.softmax(x, dim=axis)
def _gelu(x):
    return torch.nn.functional.gelu(x, approximate="tanh")
def _silu(x):
    return torch.nn.functional.silu(x)
def _sigmoid(x):
    return torch.sigmoid(x)
def _layernorm(x, axis=-1, eps=1e-5):
    m = x.mean(dim=axis, keepdim=True)
    v = x.var(dim=axis, keepdim=True, unbiased=False)
    return (x - m) / torch.sqrt(v + eps)
def _scatter_add(tgt, idx, src, axis=0):
    return tgt.clone().index_add_(axis, idx, src)
def _segment_sum(src, seg, n):
    out = torch.zeros((n,) + src.shape[1:], dtype=src.dtype)
    return out.index_add_(0, seg, src)
def _pad(x, pw):
    flat = tuple(v for pair in reversed(pw) for v in pair)
    return torch.nn.functional.pad(x, flat)

kernel_name = 'sequential_preLN__mha_block__dense_activation_silu__prompt'

def setup_inputs():

    _w = (lambda a: (lambda t: t.to(torch.bfloat16) if t.is_floating_point() else t)(torch.as_tensor(a)))
    def _A_setup():
        B, S, D, H = 1, 2048, 512, 32
        return {
            "x": _w((lambda *s: torch.randn(*s, dtype=torch.bfloat16) * 0.05)(B, S, D)),
            "wqkv": _w((lambda *s: torch.randn(*s, dtype=torch.bfloat16) * 0.05)(D, 3 * D)),
            "wo": _w((lambda *s: torch.randn(*s, dtype=torch.bfloat16) * 0.05)(D, D)),
        }
    _A_in = _A_setup()

    def _B_setup():
        B, S, D, F = 1, 2048, 512, 1376
        return {
            "x": _w((lambda *s: torch.randn(*s, dtype=torch.bfloat16) * 0.05)(B, S, D)),
            "w1": _w((lambda *s: torch.randn(*s, dtype=torch.bfloat16) * 0.8)(D, F) * (D ** -0.5)),
            "w2": _w((lambda *s: torch.randn(*s, dtype=torch.bfloat16) * 0.2)(F, D) * (F ** -0.5)),
        }
    _B_in = _B_setup()

    return {
        "A_x": _A_in["x"],
        "A_wqkv": _A_in["wqkv"],
        "A_wo": _A_in["wo"],
        "B_x": _B_in["x"],
        "B_w1": _B_in["w1"],
        "B_w2": _B_in["w2"],
    }

def reference(A_x, A_wqkv, A_wo, B_x, B_w1, B_w2):
    def _A_ref(x, wqkv, wo):
        B, S, D = x.shape
        H = 32
        Dh = D // H
        qkv = (lambda x, *d: x.permute(*d))((x @ wqkv).reshape(B, S, 3, H, Dh), 2, 0, 3, 1, 4)
        q, k, v = qkv[0], qkv[1], qkv[2]
        scores = torch.einsum("bhqd,bhkd->bhqk", q, k) * (Dh ** -0.5)
        p = _softmax(scores, axis=-1)
        o = torch.einsum("bhqk,bhkd->bhqd", p, v)
        return (lambda x, *d: x.permute(*d))(o, 0, 2, 1, 3).reshape(B, S, D) @ wo

    def _B_ref(x, w1, w2):
        h = torch.einsum("bsd,df->bsf", x, w1)
        h = _silu(h)
        out = torch.einsum("bsf,fd->bsd", h, w2)
        return out

    x = A_x
    h = x + _A_ref(_layernorm(x, axis=-1), A_wqkv, A_wo)
    h2 = h + _B_ref(_layernorm(h, axis=-1), B_w1, B_w2)
    return h2
```

```python
import re


class Asm:
    def __init__(self):
        self.lines = []
        self.uid = 0

    def __call__(self, text):
        for ln in text.split("\n"):
            ln = ln.strip()
            if not ln:
                continue
            if ln.endswith(":") or ln.startswith("."):
                self.lines.append(ln)
            else:
                self.lines.append("    " + ln)

    def c(self, text):
        self.lines.append("    ; " + text)

    def label(self, base):
        self.uid += 1
        return f".L{base}_{self.uid}"

    def nop(self, n):
        while n > 0:
            k = min(n, 16)
            self(f"s_nop {k - 1}")
            n -= k

    def text(self):
        return "\n".join(self.lines) + "\n"


def v(a, n=1):
    return f"v{a}" if n == 1 else f"v[{a}:{a + n - 1}]"


def s(a, n=1):
    return f"s{a}" if n == 1 else f"s[{a}:{a + n - 1}]"


_REG = re.compile(r"\b([vsa])(\d+)\b|\b([vsa])\[(\d+):(\d+)\]|\b(vcc_lo|vcc_hi|vcc|exec_lo|exec_hi|exec|m0)\b")
TRANS = ("v_exp_", "v_log_", "v_rcp_", "v_rsq_", "v_sqrt_", "v_sin_", "v_cos_")


def regs_of(op):
    out = set()
    for m in _REG.finditer(op):
        if m.group(1):
            out.add((m.group(1), int(m.group(2))))
        elif m.group(3):
            for i in range(int(m.group(4)), int(m.group(5)) + 1):
                out.add((m.group(3), i))
        else:
            n = m.group(6)
            if n.startswith("vcc"):
                out.add(("x", "vcc"))
            elif n.startswith("exec"):
                out.add(("x", "exec"))
            else:
                out.add(("x", "m0"))
    return out


class Ins:
    def __init__(self, text, lineno):
        self.text = text
        self.lineno = lineno
        t = text.split(";")[0].strip()
        parts = t.split(None, 1)
        self.op = parts[0]
        rest = parts[1] if len(parts) > 1 else ""
        self.ops = [o.strip() for o in re.split(r",(?![^\[]*\])", rest)] if rest else []
        op = self.op
        self.ws = 1
        if op == "s_nop":
            self.ws = int(self.ops[0]) + 1
        self.mfma = op.startswith("v_mfma") or op.startswith("v_smfmac")
        self.smfmac = op.startswith("v_smfmac")
        self.passes = 0
        if self.mfma:
            self.passes = 8 if "32x32" in op else 4
        self.valu = op.startswith("v_") and not self.mfma and op != "v_nop"
        self.trans = op.startswith(TRANS)
        self.dot = op.startswith("v_dot")
        self.vmem = op.startswith(("buffer_", "global_", "flat_"))
        self.ds = op.startswith("ds_")
        self.salu = op.startswith("s_")
        self.lds_dma = self.vmem and (" lds" in t or "load_lds" in op)
        self.w = set()
        self.r = set()
        self.srcc = set()
        self.ab = set()
        self.store_data = set()
        R = [regs_of(o) for o in self.ops]
        allr = set().union(*R) if R else set()
        if self.mfma:
            self.w = R[0]
            self.ab = R[1] | R[2]
            if self.smfmac:
                self.srcc = R[0]
                self.ab |= R[3]
            else:
                self.srcc = R[3]
            self.r = self.ab | self.srcc
        elif self.valu:
            if op.startswith("v_cmpx"):
                self.w = {("x", "exec")} | (R[0] if self.ops[0].startswith(("s", "vcc")) else set())
                self.r = set().union(*R[1:])
            elif op.startswith("v_permlane") and "swap" in op:
                self.w = R[0] | R[1]
                self.r = R[0] | R[1]
            elif "_co_" in op:
                self.w = R[0] | R[1]
                self.r = set().union(*R[2:])
            else:
                self.w = R[0]
                self.r = set().union(*R[1:]) if len(R) > 1 else set()
                if op.startswith(("v_dot2c", "v_fmac", "v_mac", "v_writelane")) or "sdwa" in op or "dpp" in t:
                    self.r |= R[0]
                if op.startswith("v_cndmask") and len(self.ops) == 3:
                    self.r.add(("x", "vcc"))
        elif self.vmem:
            if "store" in op or "atomic" in op:
                self.r = allr
                idx = 1 if op.startswith(("global_", "flat_")) else 0
                if "x3" in op or "x4" in op:
                    self.store_data = R[idx]
                if "atomic" in op and (" sc0" in t or " glc" in t):
                    self.w = R[0]
            elif self.lds_dma:
                self.r = allr | {("x", "m0")}
            elif op.startswith(("buffer_inv", "buffer_wbl2")):
                pass
            else:
                self.w = R[0]
                self.r = set().union(*R[1:])
        elif self.ds:
            if op.startswith(("ds_read", "ds_bpermute", "ds_permute", "ds_swizzle")) or "_rtn" in op:
                self.w = R[0]
                self.r = set().union(*R[1:])
            else:
                self.r = allr
        elif self.salu:
            if op.startswith(("s_cmp", "s_bitcmp", "s_cbranch", "s_branch", "s_waitcnt", "s_barrier", "s_nop", "s_endpgm",
                              "s_setprio", "s_sleep")):
                self.r = allr
            else:
                self.w = R[0] if R else set()
                self.r = set().union(*R[1:]) if len(R) > 1 else set()
                if "saveexec" in op:
                    self.w = self.w | {("x", "exec")}
                    self.r = self.r | {("x", "exec")}


def is_s(x):
    return x[0] == "s" or x == ("x", "vcc")


def need(p, c):
    best = (0, "")

    def up(n, why):
        nonlocal best
        if n > best[0]:
            best = (n, why)

    vw = {x for x in p.w if x[0] in "va"}
    sw = {x for x in p.w if is_s(x)}
    if p.valu:
        if c.mfma and vw & c.r:
            up(3 if p.dot else 2, "valu->mfma")
        if c.op.startswith("v_permlane") and vw & c.r:
            up(2, "valu->permlane")
        if ("dpp" in c.text.split(";")[0]) and c.valu and vw & c.r:
            up(2, "valu->dpp")
        if c.op.startswith(("v_readfirstlane", "v_readlane")) and vw & c.r:
            up(1, "valu->readlane")
        if p.trans and c.valu and not c.trans and vw & c.r:
            up(1, "trans->valu")
        if p.dot and (c.valu or c.vmem or c.ds) and vw & (c.r | c.w):
            same_c = c.op == p.op and not (vw & set().union(*[regs_of(o) for o in c.ops[1:]]))
            if not same_c:
                up(3, "dot->other")
        if sw:
            if c.vmem and sw & c.r:
                up(5, "valu sgpr->vmem")
            if c.valu and sw & c.r:
                up(4 if c.op.startswith(("v_readlane", "v_writelane")) else 2, "valu sgpr->valu")
        if ("x", "exec") in p.w:
            if c.mfma or c.op.startswith(("v_permlane", "v_readlane", "v_readfirstlane", "v_writelane")):
                up(4, "valu exec->mfma/perm")
        if ("sdwa" in p.op or "op_sel" in p.text) and c.valu and vw & (c.r | c.w):
            up(1, "opsel->valu")
    if p.mfma:
        big = {8: 12, 4: 8}[p.passes]
        if c.mfma:
            if vw & c.ab:
                up(big, "mfma D->mfma AB")
            if vw & c.srcc:
                if not (c.srcc == vw and c.passes == p.passes):
                    up({8: 10, 4: 6}[p.passes], "mfma D->mfma C overlap")
            elif vw & c.w and not (c.w == vw):
                up({8: 10, 4: 6}[p.passes], "mfma D->mfma D overlap")
        elif (c.valu or c.vmem or c.ds) and vw & (c.r | c.w):
            up(big, "mfma D->valu/mem")
        if c.valu and p.srcc & c.w:
            up({8: 7, 4: 3}[p.passes], "mfma C WAR")
    if p.store_data and (p.store_data & c.w):
        up(2 if c.valu else 1, "store data WAR")
    if p.salu and ("x", "m0") in p.w and c.lds_dma:
        up(1, "m0->lds dma")
    return best


def check(text, maxw=13):
    ins = []
    labels = {}
    for no, ln in enumerate(text.split("\n"), 1):
        t = ln.split(";")[0].strip()
        if not t:
            continue
        if t.endswith(":"):
            labels[t[:-1]] = len(ins)
            continue
        if t.startswith("."):
            continue
        ins.append(Ins(t, no))
    succ = []
    for i, x in enumerate(ins):
        sc = []
        if x.op == "s_endpgm":
            pass
        elif x.op == "s_branch":
            sc = [labels[x.ops[0]]]
        elif x.op.startswith("s_cbranch"):
            sc = [labels[x.ops[0]], i + 1]
        else:
            sc = [i + 1]
        succ.append([k for k in sc if k < len(ins)])
    problems = []
    for i, p in enumerate(ins):
        if not (p.valu or p.mfma or p.store_data or (p.salu and ("x", "m0") in p.w)):
            continue
        seen = {}
        stack = [(k, 0) for k in succ[i]]
        while stack:
            k, d = stack.pop()
            if d >= maxw or seen.get(k, 99) <= d:
                continue
            seen[k] = d
            c = ins[k]
            n, why = need(p, c)
            if n > d:
                problems.append(f"line {p.lineno}: '{p.text}' -> line {c.lineno}: '{c.text}' needs {n} has {d} ({why})")
            for q in succ[k]:
                stack.append((q, d + c.ws))
    return problems
```

```python
import sys, os, struct
sys.path.insert(0, os.path.dirname(os.path.abspath(__file__)))
from asmlib import Asm, v, s, check

NAME = "sequential_preLN__mha_block__dense_activation_silu__prompt"
MB = 1 << 20
QF, KV, OF, HF, FF = 0, 2 * MB, 6 * MB, 8 * MB, 10 * MB
WS_USED = 16 * MB
X_BYTES = 2048 * 1024
ONES = 0x3F803F80
EPS = 1e-5
QS = 0.25 * 1.4426950408889634


def f32(x):
    return "0x%08x" % struct.unpack("<I", struct.pack("<f", x))[0]


def srd(a, d, karg_off, nbytes):
    a(f"s_load_dwordx2 {s(d, 2)}, s[0:1], {karg_off}")
    a(f"s_mov_b32 s{d + 2}, {nbytes}")
    a(f"s_mov_b32 s{d + 3}, 0x00020000")


def begin(a, name, nwg):
    a(f".globl {name}\n.p2align 8\n.type {name},@function")
    a(f"{name}:")
    a(f"s_cmp_ge_u32 s2, {nwg}")
    a(f"s_cbranch_scc1 .Lend_{name}")


def end(a, name):
    a(f".Lend_{name}:")
    a("s_endpgm")


def wave_lane(a, swave=16):
    a("v_lshrrev_b32 v2, 6, v0")
    a("v_and_b32 v1, 63, v0")
    a(f"v_readfirstlane_b32 s{swave}, v2")


def tr_addr(a, dst, base, dorder):
    a(f"v_bfe_u32 v{dst}, v1, 2, 2")
    a("v_lshrrev_b32 v7, 5, v1")
    a(f"v_lshl_add_u32 v{dst}, v7, {2 if dorder else 3}, v{dst}")
    a(f"v_lshlrev_b32 v{dst}, 6, v{dst}")
    a("v_bfe_u32 v7, v1, 4, 1")
    a(f"v_lshl_add_u32 v{dst}, v7, 5, v{dst}")
    a("v_and_b32 v7, 3, v1")
    a(f"v_lshl_add_u32 v{dst}, v7, 3, v{dst}")
    if base:
        a(f"v_add_u32 v{dst}, {base}, v{dst}")


def ln_stats(a, s0, s1, q0, q1, t, u, tmp):
    a.nop(3)
    a(f"v_add_f32 v{s0}, v{s0}, v{s1}")
    a(f"v_add_f32 v{q0}, v{q0}, v{q1}")
    a(f"v_mov_b32 v{s1}, v{s0}")
    a(f"v_mov_b32 v{q1}, v{q0}")
    a.nop(2)
    a(f"v_permlane32_swap_b32 v{s0}, v{s1}")
    a(f"v_permlane32_swap_b32 v{q0}, v{q1}")
    a.nop(1)
    a(f"v_add_f32 v{s0}, v{s0}, v{s1}")
    a(f"v_add_f32 v{q0}, v{q0}, v{q1}")
    a(f"v_mul_f32 v{s0}, {f32(1 / 512)}, v{s0}")
    a(f"v_mul_f32 v{q0}, {f32(1 / 512)}, v{q0}")
    a(f"v_fma_f32 v{q0}, -v{s0}, v{s0}, v{q0}")
    a(f"v_max_f32 v{q0}, 0, v{q0}")
    a(f"v_add_f32 v{q0}, {f32(EPS)}, v{q0}")
    a(f"v_rsq_f32 v{t}, v{q0}")
    a.nop(1)
    a(f"v_mul_f32 v{u}, v{s0}, v{t}")
    a(f"v_sub_f32 v{u}, 0, v{u}")


def kernel_a(a):
    name = "qkv_kernel"
    XR, WR, CS, ST = 0, 81920, 143360, 143360 + 512
    begin(a, name, 256)
    srd(a, 4, 0, X_BYTES)
    srd(a, 8, 8, 512 * 3072)
    srd(a, 12, 64, WS_USED)
    wave_lane(a)
    a("s_and_b32 s19, s2, 7\ns_lshr_b32 s20, s2, 3")
    a("s_lshr_b32 s17, s19, 1\ns_lshl_b32 s17, s17, 2\ns_lshr_b32 s21, s20, 3\ns_add_u32 s17, s17, s21")
    a("s_and_b32 s18, s19, 1\ns_lshl_b32 s18, s18, 3\ns_and_b32 s21, s20, 7\ns_add_u32 s18, s18, s21")
    a(f"s_mov_b32 s22, {ONES:#x}")
    a("s_cmp_ge_u32 s16, 4")
    a("s_cbranch_scc0 .La_mfma")
    a("s_sub_u32 s16, s16, 4")
    a("v_lshrrev_b32 v2, 3, v1\nv_lshlrev_b32 v2, 10, v2")
    a("v_lshrrev_b32 v3, 4, v1\nv_and_b32 v4, 7, v1\nv_xor_b32 v3, v3, v4\nv_lshl_add_u32 v2, v3, 4, v2")
    a("v_xor_b32 v3, 64, v2")
    a(f"v_add_u32 v4, {2 * 7168}, v2\nv_add_u32 v5, {3 * 7168}, v3\nv_add_u32 v3, {7168}, v3")
    a("v_lshrrev_b32 v8, 2, v1\nv_mul_u32_u24 v8, 3072, v8\nv_and_b32 v9, 3, v1\nv_lshl_add_u32 v8, v9, 4, v8")
    a("s_lshl_b32 s20, s17, 2\ns_add_u32 s20, s20, s16\ns_lshl_b32 s20, s20, 15")
    a("s_mul_i32 s21, s16, 49152\ns_lshl_b32 s23, s18, 6\ns_add_u32 s21, s21, s23")
    a("s_mul_i32 s24, s16, 20480")
    a(f"s_mul_i32 s25, s16, 3072\ns_add_u32 s25, s25, {WR}")
    tr_addr(a, 6, WR, False)
    a("s_lshl_b32 s23, s16, 10\nv_add_u32 v6, s23, v6")
    a("v_mov_b32 v10, 0\nv_mov_b32 v11, 0")
    a("s_waitcnt lgkmcnt(0)")

    def issue(c):
        slot = c % 5
        a(f"s_add_u32 m0, s24, {slot * 4096}")
        a("s_nop 0")
        for q in range(4):
            a(f"buffer_load_dwordx4 v{2 + q}, s[4:7], s20 offen offset:{q * 1024} lds")
        a(f"s_add_u32 m0, s25, {slot * 12288}")
        a("s_add_u32 s20, s20, 128")
        for b in range(3):
            a(f"buffer_load_dwordx4 v8, s[8:11], s21 offen offset:{b * 1024} lds")
        a(f"s_add_u32 s21, s21, {64 * 3072}")

    for c in range(5):
        issue(c)
    for c in range(8):
        issued = 5 + max(0, min(c - 1, 3))
        a(f"s_waitcnt vmcnt({7 * (issued - 1 - c)})")
        a("s_barrier")
        if 1 <= c <= 3:
            issue(c + 4)
        slot = c % 5
        for st in range(4):
            for h in range(2):
                a(f"ds_read_b64_tr_b16 {v(16 + 4 * st + 2 * h, 2)}, v6 offset:{slot * 12288 + st * 3072 + h * 256}")
        for st in range(4):
            a(f"s_waitcnt lgkmcnt({6 - 2 * st})")
            for r in range(4):
                a(f"v_dot2c_f32_bf16 v{10 + (r & 1)}, s22, v{16 + 4 * st + r}")
    a.nop(3)
    a("v_add_f32 v10, v10, v11")
    a("v_mov_b32 v11, v10")
    a.nop(2)
    a("v_permlane32_swap_b32 v10, v11")
    a.nop(1)
    a("v_add_f32 v10, v10, v11")
    a("v_and_b32 v12, 31, v1\nv_lshlrev_b32 v12, 2, v12")
    a(f"s_lshl_b32 s23, s16, 7\ns_add_u32 s23, s23, {CS}\nv_add_u32 v12, s23, v12")
    a("ds_write_b32 v12, v10")
    a("s_waitcnt lgkmcnt(0)\ns_barrier")
    a("s_endpgm")
    a(".La_mfma:")
    a("v_and_b32 v8, 31, v1\nv_lshrrev_b32 v9, 5, v1")
    a("v_bfe_u32 v10, v1, 1, 3\nv_xor_b32 v10, v10, v9")
    a("s_mul_i32 s24, s16, 20480\nv_lshlrev_b32 v11, 7, v8\nv_add_u32 v11, s24, v11")
    for st in range(4):
        a(f"v_xor_b32 v12, {2 * st}, v10\nv_lshl_add_u32 v{2 + st}, v12, 4, v11")
    tr_addr(a, 6, WR, False)
    for r in range(96, 100):
        a(f"v_mov_b32 v{r}, 0")
    ACC = 16
    XB = [64, 80]
    WB = [68, 84]

    def rd_x(n):
        c, st = n >> 2, n & 3
        a(f"ds_read_b128 {v(XB[n & 1], 4)}, v{2 + st} offset:{(c % 5) * 4096}")

    def rd_w(n, b):
        c, st = n >> 2, n & 3
        for h in range(2):
            a(f"ds_read_b64_tr_b16 {v(WB[n & 1] + 4 * b + 2 * h, 2)}, v6 offset:{(c % 5) * 12288 + (st * 3 + b) * 1024 + h * 256}")

    a("s_barrier")
    rd_x(0)
    for b in range(3):
        rd_w(0, b)
    for n in range(32):
        last = n == 31
        sync = (n & 3) == 3 and not last
        x, w = XB[n & 1], WB[n & 1]
        dots = []
        for r in range(4):
            dots.append(f"v_dot2c_f32_bf16 v{96 + (r & 1)}, s22, v{x + r}")
            dots.append(f"v_dot2c_f32_bf16 v{98 + (r & 1)}, v{x + r}, v{x + r}")
        if sync:
            a("s_waitcnt lgkmcnt(0)\ns_barrier")
        for b in range(3):
            if not sync:
                a(f"s_waitcnt lgkmcnt({(4 - 2 * b) if last else (4 if b == 0 else 5)})")
            if sync and b == 0:
                rd_x(n + 1)
                rd_w(n + 1, 0)
            cin = "0" if n == 0 else v(ACC + 16 * b, 16)
            A, B = (v(w + 4 * b, 4), v(x, 4)) if b < 2 else (v(x, 4), v(w + 4 * b, 4))
            a(f"v_mfma_f32_32x32x16_bf16 {v(ACC + 16 * b, 16)}, {A}, {B}, {cin}")
            if not last:
                if b == 0:
                    if not sync:
                        rd_x(n + 1)
                        rd_w(n + 1, 0)
                else:
                    rd_w(n + 1, b)
            for d in dots[3 * b:3 * b + 3]:
                a(d)
    T, U, TQ, UQ = 100, 101, 102, 103
    ln_stats(a, 96, 97, 98, 99, T, U, 104)
    a(f"s_mov_b32 s26, 0\ns_mov_b32 s27, -1")
    a(f"v_mul_f32 v{TQ}, {f32(QS)}, v{T}\nv_mul_f32 v{UQ}, {f32(QS)}, v{U}")
    a(f"v_cndmask_b32 v104, v{T}, v{U}, s[26:27]")
    a(f"s_lshl_b32 s23, s16, 8\ns_add_u32 s23, s23, {ST}\nv_lshl_add_u32 v105, v1, 2, s23")
    a("ds_write_b32 v105, v104")
    a(f"v_lshlrev_b32 v106, 4, v9")
    a(f"v_add_u32 v107, s23, v106")
    a(f"v_lshlrev_b32 v108, 2, v8")
    a(f"v_add_u32 v106, {CS}, v106\nv_add_u32 v108, {CS}, v108")
    a("s_waitcnt lgkmcnt(0)\ns_barrier")
    for b in range(2):
        for g in range(4):
            a(f"ds_read_b128 {v(64 + 16 * b + 4 * g, 4)}, v106 offset:{b * 128 + g * 32}")
    a(f"ds_read_b32 v109, v108 offset:256")
    for g in range(4):
        a(f"ds_read_b128 {v(112 + 4 * g, 4)}, v107 offset:{g * 32}")
        a(f"ds_read_b128 {v(128 + 4 * g, 4)}, v107 offset:{128 + g * 32}")
    a("s_lshl_b32 s28, s17, 2\ns_add_u32 s28, s28, s16")
    a(f"s_lshl_b32 s29, s18, 17\ns_lshl_b32 s30, s28, 10\ns_add_u32 s29, s29, s30\ns_add_u32 s30, s29, 65536")
    a(f"s_lshl_b32 s31, s18, 18\ns_lshl_b32 s32, s28, 11\ns_add_u32 s31, s31, s32\ns_add_u32 s31, s31, {KV}\ns_add_u32 s32, s31, 131072")
    a("v_lshlrev_b32 v110, 4, v1")
    a("v_and_b32 v111, 0x33, v1\nv_bfe_u32 v7, v1, 2, 1\nv_lshl_or_b32 v111, v7, 3, v111\nv_bfe_u32 v7, v1, 3, 1\nv_lshl_or_b32 v111, v7, 2, v111\nv_lshlrev_b32 v111, 4, v111")
    a("v_and_b32 v104, 15, v1\nv_lshlrev_b32 v104, 4, v104\nv_lshl_add_u32 v104, v9, 8, v104\nv_bfe_u32 v7, v1, 4, 1\nv_lshl_add_u32 v104, v7, 17, v104")
    for b in range(2):
        a(f"s_waitcnt lgkmcnt({13 - 4 * b})")
        t, u = (TQ, UQ) if b == 0 else (T, U)
        base = 64 + 16 * b
        for r in range(16):
            a(f"v_mul_f32 v{base + r}, v{base + r}, v{u}")
        for r in range(16):
            a(f"v_fmac_f32 v{base + r}, v{ACC + 16 * b + r}, v{t}")
        for r in range(8):
            a(f"v_cvt_pk_bf16_f32 v{ACC + 16 * b + r}, v{base + 2 * r}, v{base + 2 * r + 1}")
        for hh in range(2):
            a(f"buffer_store_dwordx4 {v(ACC + 16 * b + 4 * hh, 4)}, v{110 + b}, s[12:15], s{29 + 2 * b + hh} offen")
    a("s_waitcnt lgkmcnt(0)")
    for r in range(16):
        a(f"v_mul_f32 v{128 + r}, v{128 + r}, v109")
    for r in range(16):
        a(f"v_fmac_f32 v{128 + r}, v{ACC + 32 + r}, v{112 + r}")
    for r in range(8):
        a(f"v_cvt_pk_bf16_f32 v{ACC + 32 + r}, v{128 + 2 * r}, v{128 + 2 * r + 1}")
    for sub in range(2):
        a(f"buffer_store_dwordx4 {v(ACC + 32 + 4 * sub, 4)}, v104, s[12:15], s31 offen offset:{1024 + 512 * sub}")
    end(a, name)
    return name, 256, 512, ST + 1024, 144


def kernel_b(a):
    name = "attn_kernel"
    begin(a, name, 256)
    srd(a, 4, 64, WS_USED)
    wave_lane(a)
    a("s_and_b32 s19, s2, 7\ns_lshr_b32 s20, s2, 3")
    a("s_lshl_b32 s17, s19, 2\ns_lshr_b32 s21, s20, 3\ns_add_u32 s17, s17, s21")
    a("s_and_b32 s18, s20, 7\ns_lshl_b32 s18, s18, 3\ns_add_u32 s18, s18, s16")
    a("v_lshlrev_b32 v2, 4, v1")
    a(f"s_lshl_b32 s19, s17, 16\ns_lshl_b32 s20, s18, 10\ns_add_u32 s19, s19, s20")
    a(f"s_lshl_b32 s22, s16, 10\ns_lshl_b32 s23, s17, 17\ns_add_u32 s23, s23, s22\ns_add_u32 s23, s23, {KV}")
    a("s_waitcnt lgkmcnt(0)")
    Q, KB, VB, SB, O, CB, IDX = 8, [12, 16], [20, 28], [36, 52], 68, 84, 100
    a(f"buffer_load_dwordx4 {v(Q, 4)}, v2, s[4:7], s19 offen")
    for n in range(16):
        a(f"s_add_u32 m0, s22, {n * 8192}")
        a("s_nop 0")
        a(f"buffer_load_dwordx4 v2, s[4:7], s23 offen lds")
        a("s_add_u32 s23, s23, 8192")
    a("v_and_b32 v3, 15, v1\nv_lshlrev_b32 v3, 4, v3\nv_lshrrev_b32 v4, 5, v1\nv_lshl_add_u32 v3, v4, 8, v3")
    a("s_mov_b32 s20, 0xffff\ns_mov_b32 s21, 0xffff")
    a(f"v_mov_b32 v{IDX}, 0xdddddddd")
    for r in range(16):
        a(f"v_mov_b32 v{VB[0] + r}, {ONES:#x}")
        a(f"v_mov_b32 v{CB + r}, 0")
    a("s_mov_b32 s24, 0x22")
    a("s_mov_b32 s26, 0")
    a("s_waitcnt vmcnt(14)\ns_barrier")

    def rdK(t, off):
        a(f"ds_read_b128 {v(KB[t & 1], 4)}, v4 offset:{off}")

    def rdV(t, off):
        a("s_mov_b64 exec, s[20:21]")
        a(f"ds_read_b128 {v(VB[t & 1], 4)}, v5 offset:{off + 1024}")
        a(f"ds_read_b128 {v(VB[t & 1] + 4, 4)}, v5 offset:{off + 1536}")
        a("s_mov_b64 exec, -1")

    def qk(t):
        a(f"v_mfma_f32_32x32x16_bf16 {v(SB[t & 1], 16)}, {v(KB[t & 1], 4)}, {v(Q, 4)}, {v(CB, 16)}")

    def pv(t, h):
        a(f"v_smfmac_f32_32x32x32_bf16 {v(O, 16)}, {v(VB[t & 1] + 4 * h, 4)}, {v(SB[t & 1] + 8 * h, 8)}, v{IDX}")

    def ex(t, lo, hi):
        for r in range(lo, hi):
            a(f"v_exp_f32 v{SB[t & 1] + r}, v{SB[t & 1] + r}")

    a(".Lb_start:")
    a("v_mov_b32 v4, v2\nv_mov_b32 v5, v3")
    rdK(0, 0)
    rdK(1, 2048)
    rdV(0, 0)
    for r in range(16):
        a(f"v_mov_b32 v{O + r}, 0")
    for r in range(8, 16):
        a(f"v_mov_b32 v{SB[1] + r}, 0")
    for r in range(4):
        a(f"v_mov_b32 v{VB[1] + 4 + r}, {ONES:#x}")
    a("s_mov_b32 s25, 0")
    a("s_waitcnt lgkmcnt(3)")
    qk(0)
    a.nop(10)
    a(".Lb_loop:")
    a("s_bitcmp1_b32 s24, s25")
    a("s_cbranch_scc0 .Lb_nosync")
    a("s_cmp_eq_u32 s25, 1\ns_cbranch_scc0 .Lb_sync2\ns_waitcnt vmcnt(10)\ns_branch .Lb_sync1")
    a(".Lb_sync2:\ns_waitcnt vmcnt(0)\n.Lb_sync1:\ns_barrier")
    a(".Lb_nosync:")
    for t in range(4):
        ex(t, 0, 2)
        pv(t - 1, 1)
        a("s_waitcnt lgkmcnt(2)")
        ex(t, 2, 6)
        qk(t + 1)
        rdK(t + 2, (t + 2) * 2048)
        ex(t, 6, 10)
        a("s_waitcnt lgkmcnt(1)")
        pv(t, 0)
        ex(t, 10, 12)
        rdV(t + 1, (t + 1) * 2048)
        ex(t, 12, 16)
    a("v_add_u32 v4, 8192, v4\nv_add_u32 v5, 8192, v5")
    a("s_add_u32 s25, s25, 1\ns_cmp_lt_u32 s25, 16\ns_cbranch_scc1 .Lb_loop")
    pv(3, 1)
    a("s_waitcnt lgkmcnt(0)")
    a.nop(11)
    a("s_cmp_lg_u32 s26, 0\ns_cbranch_scc1 .Lb_out")
    a(f"s_mov_b32 s28, {f32(2.0 ** -40)}\ns_mov_b32 s29, {f32(2.0 ** 40)}")
    a(f"v_cmp_le_f32 s[30:31], s28, v{O + 8}")
    a(f"v_cmp_ge_f32 vcc, s29, v{O + 8}")
    a("s_and_b64 s[30:31], s[30:31], vcc")
    a(f"v_add_f32 v7, |v{O}|, |v{O + 1}|")
    for r in range(2, 8):
        a(f"v_add_f32 v7, v7, |v{O + r}|")
    a(f"s_mov_b32 s28, {f32(2.0 ** 126)}")
    a("v_cmp_ge_f32 vcc, s28, v7")
    a("s_and_b64 s[30:31], s[30:31], vcc")
    a("s_cmp_eq_u64 s[30:31], -1")
    a("s_cbranch_scc1 .Lb_out")
    a("s_mov_b32 s26, 1\ns_mov_b32 s24, 0\ns_mov_b32 s25, 0")
    a("v_mov_b32 v4, v2\nv_mov_b32 v6, 0xff800000")
    a(".Lb_max:")
    rdK(0, 0)
    a("s_waitcnt lgkmcnt(0)")
    a(f"v_mfma_f32_32x32x16_bf16 {v(SB[0], 16)}, {v(KB[0], 4)}, {v(Q, 4)}, 0")
    a("v_add_u32 v4, 2048, v4")
    a.nop(11)
    for r in range(0, 16, 2):
        a(f"v_max3_f32 v6, v6, v{SB[0] + r}, v{SB[0] + r + 1}")
    a("s_add_u32 s25, s25, 1\ns_cmp_lt_u32 s25, 64\ns_cbranch_scc1 .Lb_max")
    a("v_mov_b32 v7, v6")
    a.nop(2)
    a("v_permlane32_swap_b32 v6, v7")
    a.nop(1)
    a("v_max_f32 v6, v6, v7")
    for r in range(16):
        a(f"v_sub_f32 v{CB + r}, 0, v6")
    a("s_branch .Lb_start")
    a(".Lb_out:")
    a(f"v_rcp_f32 v6, v{O + 8}")
    a(f"s_lshl_b32 s19, s18, 15\ns_lshl_b32 s20, s17, 10\ns_add_u32 s19, s19, s20\ns_add_u32 s19, s19, {OF}")
    for r in range(8):
        a(f"v_mul_f32 v{O + r}, v{O + r}, v6")
    for r in range(4):
        a(f"v_cvt_pk_bf16_f32 v{O + r}, v{O + 2 * r}, v{O + 2 * r + 1}")
    a(f"buffer_store_dwordx4 {v(O, 4)}, v2, s[4:7], s19 offen")
    end(a, name)
    return name, 256, 512, 131072 + 8192, 104


def tile64_ids(a):
    a("s_and_b32 s19, s2, 7\ns_lshr_b32 s20, s2, 3")
    a("s_lshl_b32 s17, s19, 2\ns_lshr_b32 s21, s20, 3\ns_add_u32 s17, s17, s21")
    a("s_and_b32 s18, s20, 7")


def kernel_c(a):
    name = "oproj_kernel"
    RED, XT = 65536, 65536 + 16384
    begin(a, name, 256)
    srd(a, 4, 16, 512 * 1024)
    srd(a, 8, 0, X_BYTES)
    srd(a, 12, 64, WS_USED)
    wave_lane(a)
    tile64_ids(a)
    a("s_cmp_ge_u32 s16, 4")
    a("s_cbranch_scc0 .Lc_mfma")
    w64_loader(a, 16, 4, xt=XT)
    a(".Lc_mfma:")
    tile64_mfma(a, 16, 4, OF, 32768, RED)
    a("v_and_b32 v8, 31, v1\nv_lshrrev_b32 v9, 5, v1")
    a("s_and_b32 s23, s16, 1\ns_lshl_b32 s23, s23, 12\ns_lshr_b32 s24, s16, 1\ns_lshl_b32 s24, s24, 2")
    a(f"s_add_u32 s23, s23, {XT}")
    a("v_lshlrev_b32 v10, 7, v8\nv_lshl_add_u32 v10, v9, 3, v10\nv_add_u32 v10, s23, v10")
    a("v_bfe_u32 v11, v1, 1, 3\nv_xor_b32 v11, s24, v11")
    for g in range(4):
        a(f"v_xor_b32 v12, {g}, v11\nv_lshl_add_u32 v12, v12, 4, v10")
        a(f"ds_read_b64 {v(48 + 2 * g, 2)}, v12")
    a(f"s_lshl_b32 s19, s17, 1\ns_and_b32 s20, s16, 1\ns_add_u32 s19, s19, s20\ns_lshl_b32 s19, s19, 15")
    a(f"s_lshl_b32 s20, s18, 12\ns_add_u32 s19, s19, s20\ns_lshr_b32 s20, s16, 1\ns_lshl_b32 s20, s20, 11\ns_add_u32 s19, s19, s20\ns_add_u32 s19, s19, {HF}")
    a("s_waitcnt lgkmcnt(0)")
    for p in range(8):
        a(f"v_lshlrev_b32 v12, 16, v{48 + p}\nv_and_b32 v13, 0xffff0000, v{48 + p}")
        a(f"v_add_f32 v{16 + 2 * p}, v{16 + 2 * p}, v12\nv_add_f32 v{17 + 2 * p}, v{17 + 2 * p}, v13")
    for p in range(8):
        a(f"v_cvt_pk_bf16_f32 v{16 + p}, v{16 + 2 * p}, v{17 + 2 * p}")
    for k in range(2):
        a(f"buffer_store_dwordx4 {v(16 + 4 * k, 4)}, v2, s[12:15], s19 offen offset:{1024 * k}")
    end(a, name)
    return name, 256, 512, XT + 8192, 144


def w64_loader(a, NK, NSLOT, xt=None):
    NCH = (NK + 3) // 4
    a("s_sub_u32 s16, s16, 4")
    a("v_lshrrev_b32 v8, 2, v1\nv_lshlrev_b32 v8, 10, v8\nv_and_b32 v9, 3, v1\nv_lshl_add_u32 v8, v9, 4, v8")
    a("v_add_u32 v9, 64, v8")
    a("s_lshl_b32 s20, s16, 14\ns_lshl_b32 s21, s18, 7\ns_add_u32 s20, s20, s21")
    a(f"s_add_u32 s21, s20, {NK * 16384}")
    a("s_lshl_b32 s24, s16, 11")
    if xt is not None:
        a("v_lshrrev_b32 v2, 3, v1\nv_lshlrev_b32 v2, 10, v2")
        a("v_lshrrev_b32 v3, 4, v1\nv_and_b32 v4, 7, v1\nv_xor_b32 v3, v3, v4\nv_lshl_add_u32 v2, v3, 4, v2")
        a("v_xor_b32 v3, 64, v2\nv_add_u32 v3, 7168, v3")
        a("s_lshl_b32 s25, s17, 2\ns_add_u32 s25, s25, s16\ns_lshl_b32 s25, s25, 14\ns_lshl_b32 s26, s18, 7\ns_add_u32 s25, s25, s26")
    a("s_waitcnt lgkmcnt(0)")

    def issue(c):
        slot = c % NSLOT
        for hb in range(4):
            a(f"s_add_u32 m0, s24, {slot * 16384 + (hb >> 1) * 8192 + (hb & 1) * 1024}")
            a("s_nop 0")
            a(f"buffer_load_dwordx4 v{8 + (hb & 1)}, s[4:7], s{20 + (hb >> 1)} offen lds")
        a("s_add_u32 s20, s20, 65536\ns_add_u32 s21, s21, 65536")

    first = min(NCH, NSLOT)
    extra = 0
    for c in range(first):
        issue(c)
        if c == 0 and xt is not None:
            a(f"s_add_u32 m0, s24, {xt}")
            a("s_nop 0")
            a("buffer_load_dwordx4 v2, s[8:11], s25 offen lds")
            a("buffer_load_dwordx4 v3, s[8:11], s25 offen offset:1024 lds")
            extra = 2
    for c in range(NCH):
        issued = first + max(0, min(c - 1, NCH - first))
        n = 4 * (issued - 1 - c) + (extra if c == 0 else 0)
        a(f"s_waitcnt vmcnt({n})")
        a("s_barrier")
        if c >= 1 and first + c - 1 < NCH:
            issue(first + c - 1)
    a("s_barrier")
    a("s_endpgm")


def tile64_mfma(a, NK, NSLOT, act, act_stride, RED, pre=None):
    ACC, WB, FR = 16, [48, 56], 64
    a("v_lshlrev_b32 v2, 4, v1")
    a(f"s_lshl_b32 s19, s17, 1\ns_and_b32 s20, s16, 1\ns_add_u32 s19, s19, s20\ns_mul_i32 s19, s19, {act_stride}")
    a(f"s_lshr_b32 s20, s16, 1\ns_mul_i32 s21, s20, {NK * 1024}\ns_add_u32 s19, s19, s21\ns_add_u32 s19, s19, {act}")
    a("s_waitcnt lgkmcnt(0)")
    for k in range(NK):
        a(f"buffer_load_dwordx4 {v(FR + 4 * k, 4)}, v2, s[12:15], s19 offen offset:{(k & 3) * 1024}")
        if (k & 3) == 3:
            a("s_add_u32 s19, s19, 4096")
    npre = 0
    if pre is not None:
        npre = pre()
    tr_addr(a, 6, 0, True)
    a("s_lshl_b32 s21, s20, 13\nv_add_u32 v6, s21, v6")
    for i in range(1, 3):
        a(f"v_add_u32 v{2 + i}, {65536 * i}, v6")
    base = [6, 3, 4]

    def rd_w(n):
        c, st = n >> 2, n & 3
        off = (c % NSLOT) * 16384 + st * 2048
        for b in range(2):
            for h in range(2):
                a(f"ds_read_b64_tr_b16 {v(WB[n & 1] + 4 * b + 2 * h, 2)}, v{base[off >> 16]} offset:{(off & 65535) + b * 1024 + h * 512}")

    a("s_barrier")
    rd_w(0)
    for n in range(NK):
        last = n == NK - 1
        sync = (n & 3) == 3 and not last
        if sync:
            a("s_waitcnt lgkmcnt(0)\ns_barrier")
        if not last:
            rd_w(n + 1)
        a(f"s_waitcnt vmcnt({NK - 1 - n + npre}) lgkmcnt({2 if last else 6})")
        for b in range(2):
            if b == 1 and not sync:
                a(f"s_waitcnt lgkmcnt({0 if last else 4})")
            cin = "0" if n == 0 else v(ACC + 16 * b, 16)
            a(f"v_mfma_f32_32x32x16_bf16 {v(ACC + 16 * b, 16)}, {v(WB[n & 1] + 4 * b, 4)}, {v(FR + 4 * n, 4)}, {cin}")
    a(f"s_lshl_b32 s21, s16, 12\ns_add_u32 s21, s21, {RED}\nv_add_u32 v3, s21, v2")
    a(f"s_xor_b32 s21, s16, 2\ns_lshl_b32 s21, s21, 12\ns_add_u32 s21, s21, {RED}\nv_add_u32 v4, s21, v2")
    lab = a.label("x")
    a(f"s_cmp_eq_u32 s20, 0\ns_cbranch_scc1 {lab}_0")
    a.nop(3)
    for g in range(4):
        a(f"ds_write_b128 v3, {v(ACC + 4 * g, 4)} offset:{g * 1024}")
    for r in range(16):
        a(f"v_mov_b32 v{ACC + r}, v{ACC + 16 + r}")
    a(f"s_branch {lab}_1")
    a(f"{lab}_0:")
    a.nop(3)
    for g in range(4):
        a(f"ds_write_b128 v3, {v(ACC + 16 + 4 * g, 4)} offset:{g * 1024}")
    a(f"{lab}_1:")
    a("s_waitcnt lgkmcnt(0)\ns_barrier")
    for g in range(4):
        a(f"ds_read_b128 {v(ACC + 16 + 4 * g, 4)}, v4 offset:{g * 1024}")
    for g in range(4):
        a(f"s_waitcnt lgkmcnt({3 - g})")
        for r in range(4):
            a(f"v_add_f32 v{ACC + 4 * g + r}, v{ACC + 4 * g + r}, v{ACC + 16 + 4 * g + r}")


def kernel_e(a):
    name = NAME + "_kernel"
    begin(a, name, 256)
    srd(a, 4, 40, 1376 * 1024)
    srd(a, 8, 48, X_BYTES)
    srd(a, 12, 64, WS_USED)
    wave_lane(a)
    tile64_ids(a)
    a("s_cmp_ge_u32 s16, 4")
    a("s_cbranch_scc0 .Le_mfma")
    w64_loader(a, 43, 9)
    a(".Le_mfma:")
    H = 240

    def pre():
        a(f"s_lshl_b32 s19, s17, 1\ns_and_b32 s21, s16, 1\ns_add_u32 s19, s19, s21\ns_lshl_b32 s19, s19, 15")
        a(f"s_lshl_b32 s21, s18, 12\ns_add_u32 s19, s19, s21\ns_lshl_b32 s21, s20, 11\ns_add_u32 s19, s19, s21\ns_add_u32 s19, s19, {HF}")
        for k in range(2):
            a(f"buffer_load_dwordx4 {v(H + 4 * k, 4)}, v2, s[12:15], s19 offen offset:{1024 * k}")
        return 2

    tile64_mfma(a, 43, 9, FF, 86 * 1024, 32768, pre)
    a("v_and_b32 v8, 31, v1\nv_lshrrev_b32 v9, 5, v1")
    a("v_lshlrev_b32 v8, 10, v8\nv_lshl_add_u32 v8, v9, 4, v8")
    a("s_lshl_b32 s19, s17, 1\ns_and_b32 s21, s16, 1\ns_add_u32 s19, s19, s21\ns_lshl_b32 s19, s19, 15")
    a("s_lshl_b32 s21, s18, 7\ns_add_u32 s19, s19, s21\ns_lshl_b32 s21, s20, 6\ns_add_u32 s19, s19, s21")
    a("s_waitcnt vmcnt(0)")
    for p in range(8):
        a(f"v_lshlrev_b32 v12, 16, v{H + p}\nv_and_b32 v13, 0xffff0000, v{H + p}")
        a(f"v_add_f32 v{16 + 2 * p}, v{16 + 2 * p}, v12\nv_add_f32 v{17 + 2 * p}, v{17 + 2 * p}, v13")
    for p in range(8):
        a(f"v_cvt_pk_bf16_f32 v{16 + p}, v{16 + 2 * p}, v{17 + 2 * p}")
    a.nop(2)
    for k in range(2):
        a(f"v_permlane32_swap_b32 v{16 + 4 * k}, v{18 + 4 * k}")
        a(f"v_permlane32_swap_b32 v{17 + 4 * k}, v{19 + 4 * k}")
    for k in range(2):
        a(f"buffer_store_dwordx4 {v(16 + 4 * k, 4)}, v8, s[8:11], s19 offen offset:{32 * k}")
    end(a, name)
    return name, 256, 512, 9 * 16384, 248


def kernel_d(a):
    name = "ffn1_kernel"
    CS = 98304
    begin(a, name, 240)
    srd(a, 8, 32, 512 * 2752)
    srd(a, 12, 64, WS_USED)
    wave_lane(a)
    a("s_and_b32 s19, s2, 7\ns_lshr_b32 s18, s2, 3\ns_lshl_b32 s17, s19, 1")
    a("s_cmp_ge_u32 s18, 15\ns_cbranch_scc0 .Ld_lo\ns_sub_u32 s18, s18, 15\ns_add_u32 s17, s17, 1\n.Ld_lo:")
    a(f"s_mov_b32 s22, {ONES:#x}")
    a("s_cmp_ge_u32 s16, 4")
    a("s_cbranch_scc0 .Ld_mfma")
    a("s_sub_u32 s16, s16, 4")
    a("v_lshrrev_b32 v8, 2, v1\nv_mul_u32_u24 v8, 2752, v8\nv_and_b32 v9, 3, v1\nv_lshl_add_u32 v8, v9, 4, v8")
    a("v_add_u32 v9, 64, v8\nv_add_u32 v10, 128, v8")
    a(f"s_mul_i32 s21, s16, {16 * 2752}\ns_mul_i32 s23, s18, 192\ns_add_u32 s21, s21, s23")
    a("s_mul_i32 s25, s16, 3072")
    tr_addr(a, 6, 0, True)
    a("s_lshl_b32 s23, s16, 10\nv_add_u32 v6, s23, v6\nv_add_u32 v5, 49152, v6")
    a("v_mov_b32 v12, 0\nv_mov_b32 v13, 0")
    a("s_waitcnt lgkmcnt(0)")
    for c in range(8):
        for b in range(3):
            a(f"s_add_u32 m0, s25, {c * 12288 + b * 1024}")
            a("s_nop 0")
            a(f"buffer_load_dwordx4 v{8 + b}, s[8:11], s21 offen lds")
        a(f"s_add_u32 s21, s21, {64 * 2752}")
    for c in range(8):
        a(f"s_waitcnt vmcnt({3 * (7 - c)})")
        a("s_barrier")
        for st in range(4):
            for h in range(2):
                a(f"ds_read_b64_tr_b16 {v(16 + 4 * st + 2 * h, 2)}, v{6 - (c >> 2)} offset:{(c & 3) * 12288 + st * 3072 + h * 512}")
        for st in range(4):
            a(f"s_waitcnt lgkmcnt({6 - 2 * st})")
            for r in range(4):
                a(f"v_dot2c_f32_bf16 v{12 + (r & 1)}, s22, v{16 + 4 * st + r}")
    a.nop(3)
    a("v_add_f32 v12, v12, v13")
    a("v_mov_b32 v13, v12")
    a.nop(2)
    a("v_permlane32_swap_b32 v12, v13")
    a.nop(1)
    a("v_add_f32 v12, v12, v13")
    a("v_and_b32 v14, 31, v1\nv_lshlrev_b32 v14, 2, v14")
    a(f"s_lshl_b32 s23, s16, 7\ns_add_u32 s23, s23, {CS}\nv_add_u32 v14, s23, v14")
    a("ds_write_b32 v14, v12")
    a("s_waitcnt lgkmcnt(0)\ns_barrier")
    a("s_endpgm")
    a(".Ld_mfma:")
    ACC, WB, FR = 16, [64, 76], 96
    a("v_lshlrev_b32 v2, 4, v1")
    a(f"s_lshl_b32 s28, s17, 2\ns_add_u32 s28, s28, s16\ns_lshl_b32 s19, s28, 15\ns_add_u32 s19, s19, {HF}")
    a("s_waitcnt lgkmcnt(0)")
    for k in range(32):
        a(f"buffer_load_dwordx4 {v(FR + 4 * k, 4)}, v2, s[12:15], s19 offen offset:{(k & 3) * 1024}")
        if (k & 3) == 3:
            a("s_add_u32 s19, s19, 4096")
    tr_addr(a, 6, 0, True)
    a("v_add_u32 v5, 49152, v6")
    for r in range(88, 92):
        a(f"v_mov_b32 v{r}, 0")

    def rd_w(n, b):
        for h in range(2):
            a(f"ds_read_b64_tr_b16 {v(WB[n & 1] + 4 * b + 2 * h, 2)}, v{6 - (n >> 4)} offset:{((n & 15) * 3 + b) * 1024 + h * 512}")

    a("s_barrier")
    for b in range(3):
        rd_w(0, b)
    for n in range(32):
        last = n == 31
        sync = (n & 3) == 3 and not last
        x, w = FR + 4 * n, WB[n & 1]
        dots = []
        for r in range(4):
            dots.append(f"v_dot2c_f32_bf16 v{88 + (r & 1)}, s22, v{x + r}")
            dots.append(f"v_dot2c_f32_bf16 v{90 + (r & 1)}, v{x + r}, v{x + r}")
        if sync:
            a("s_barrier")
        for b in range(3):
            lg = (4 - 2 * b) if last else 4
            if b == 0:
                a(f"s_waitcnt vmcnt({31 - n}) lgkmcnt({lg})")
            else:
                a(f"s_waitcnt lgkmcnt({lg})")
            cin = "0" if n == 0 else v(ACC + 16 * b, 16)
            a(f"v_mfma_f32_32x32x16_bf16 {v(ACC + 16 * b, 16)}, {v(w + 4 * b, 4)}, {v(x, 4)}, {cin}")
            if not last:
                rd_w(n + 1, b)
            for d in dots[3 * b:3 * b + 3]:
                a(d)
    T, U = 92, 93
    ln_stats(a, 88, 89, 90, 91, T, U, 94)
    a("v_sqrt_f32 v94, v90")
    a(f"v_mul_f32 v95, {f32(-1.4426950408889634)}, v{T}")
    a("v_sub_f32 v88, 0, v88")
    a("v_lshrrev_b32 v9, 5, v1\nv_lshlrev_b32 v9, 4, v9")
    a(f"v_add_u32 v9, {CS}, v9")
    a(f"s_mul_i32 s19, s28, {86 * 1024}\ns_mul_i32 s20, s18, 6144\ns_add_u32 s19, s19, s20\ns_add_u32 s19, s19, {FF}")
    a("s_barrier")
    for b in range(3):
        for g in range(4):
            a(f"ds_read_b128 {v(96 + 16 * b + 4 * g, 4)}, v9 offset:{b * 128 + g * 32}")
    for b in range(3):
        a(f"s_waitcnt lgkmcnt({8 - 4 * b})")
        A = ACC + 16 * b
        C = 96 + 16 * b
        for r in range(16):
            a(f"v_fmac_f32 v{A + r}, v{C + r}, v88")
        for r in range(16):
            a(f"v_mul_f32 v{C + r}, v{A + r}, v95")
        for r in range(16):
            a(f"v_exp_f32 v{C + r}, v{C + r}")
        for r in range(16):
            a(f"v_fma_f32 v{C + r}, v{C + r}, v94, v94")
        for r in range(16):
            a(f"v_rcp_f32 v{C + r}, v{C + r}")
        for r in range(16):
            a(f"v_mul_f32 v{C + r}, v{A + r}, v{C + r}")
        for r in range(8):
            a(f"v_cvt_pk_bf16_f32 v{A + r}, v{C + 2 * r}, v{C + 2 * r + 1}")
        for k in range(2):
            a(f"buffer_store_dwordx4 {v(A + 4 * k, 4)}, v2, s[12:15], s19 offen offset:{1024 * k}")
        if b == 0:
            a(f"s_cmp_eq_u32 s18, 14\ns_cbranch_scc1 .Lend_{name}")
        a("s_add_u32 s19, s19, 2048")
    end(a, name)
    return name, 240, 512, CS + 1024, 224


def build(dummy=0):
    hdr = open(os.path.join(os.path.dirname(os.path.abspath(__file__)), "header.txt")).read()
    a = Asm()
    a('.amdgcn_target "amdgcn-amd-amdhsa--gfx950"\n.text')
    ks = [k(a) for k in (kernel_a, kernel_b, kernel_c, kernel_d, kernel_e)]
    launches = list(ks)
    if dummy:
        begin(a, "nothing_kernel", 0)
        end(a, "nothing_kernel")
        ks.append(("nothing_kernel", 1, 64, 0, 8))
        launches += [ks[-1]] * dummy
    a('.section .rodata,"a"')
    for name, g, b, lds, nv in ks:
        a(f""".p2align 6
.amdhsa_kernel {name}
.amdhsa_next_free_vgpr {nv}
.amdhsa_next_free_sgpr 96
.amdhsa_accum_offset {(nv + 3) // 4 * 4}
.amdhsa_group_segment_fixed_size 0
.amdhsa_kernarg_size 72
.amdhsa_user_sgpr_count 2
.amdhsa_user_sgpr_kernarg_segment_ptr 1
.amdhsa_system_sgpr_workgroup_id_x 1
.amdhsa_float_denorm_mode_32 3
.end_amdhsa_kernel""")
    for name, g, b, lds, nv in launches:
        hdr += f"; @launch kernel={name} grid=({g},1,1) block=({b},1,1) lds={lds}\n"
    return hdr + a.text()


if __name__ == "__main__":
    out = sys.argv[1]
    dummy = int(sys.argv[2]) if len(sys.argv) > 2 else 0
    txt = build(dummy)
    probs = check(txt)
    for p in probs:
        print("HAZARD", p)
    open(out, "w").write(txt)
    print("wrote", out, len(txt), "bytes;", len(probs), "hazards")
```

```python
import sys, os, struct
sys.path.insert(0, os.path.dirname(os.path.abspath(__file__)))
from asmlib import Asm, v, s, check

NAME = "sequential_preLN__mha_block__dense_activation_silu__prompt"
K = 1024
MB = 1 << 20
KV, OF, HF, FF, ST, FL = 0, 4 * MB, 6 * MB, 8 * MB, 14 * MB, 15 * MB
FA, FB, FC, FD = FL, FL + 4 * K, FL + 12 * K, FL + 20 * K
WS_USED = 16 * MB
STAMP = int(os.environ.get("STAMP", "0"))
OPT = dict(kv.split("=") for kv in os.environ.get("OPT", "").split(",") if kv)
NST, SST = 22, 58
if STAMP:
    WS_USED = 32 * MB
X_BYTES = 2048 * 1024
ONES = 0x3F803F80
EPS = 1e-5
LOG2E = 1.4426950408889634
QS = 0.25 * LOG2E
W1ROW = 2752
W1STEP = 16 * W1ROW

SX, SWQ, SWS, SWO, SW1, SW2, SOUT, SDBG, SWP = 4, 8, 12, 16, 20, 24, 28, 32, 36
sW, sRA, sJ, sRT, sM, sBUD = 40, 41, 42, 43, 44, 45


def opt(name, default):
    return int(OPT.get(name, default))


def f32(x):
    return "0x%08x" % struct.unpack("<I", struct.pack("<f", x))[0]


class Cnt:
    def __init__(self, a, name, cap):
        self.a, self.name, self.cap, self.q = a, name, cap, []

    def issue(self, tag, n=1):
        self.q += [tag] * n

    def left(self, tag):
        idx = [i for i, t in enumerate(self.q) if t == tag]
        if not idx:
            return None
        return min(len(self.q) - 1 - idx[-1], self.cap)

    def wait(self, tag):
        n = self.left(tag)
        if n is None:
            return
        self.a(f"s_waitcnt {self.name}({n})")
        self.q = self.q[len(self.q) - n:] if n else []


def stamp(a, i):
    if STAMP:
        a(f"s_memrealtime {s(SST + 2 * i, 2)}")


def stamp_flush(a):
    if not STAMP:
        return
    a("s_waitcnt vmcnt(0)")
    stamp(a, NST - 1)
    a(f"s_lshl_b32 s47, s2, 3\ns_add_u32 s47, s47, s{sW}\ns_mul_i32 s47, s47, {8 * NST}\ns_add_u32 s47, s47, {24 * MB}")
    a("s_waitcnt lgkmcnt(0)\nv_mov_b32 v4, 0")
    for i in range(NST):
        a(f"v_mov_b32 v2, s{SST + 2 * i}\nv_mov_b32 v3, s{SST + 1 + 2 * i}")
        a(f"buffer_store_dwordx2 v[2:3], v4, {s(SWS, 4)}, s47 offen offset:{8 * i}")
        a("s_nop 1")


def tr_addr(a, dst, dorder):
    a(f"v_bfe_u32 v{dst}, v1, 2, 2")
    a("v_lshrrev_b32 v7, 5, v1")
    a(f"v_lshl_add_u32 v{dst}, v7, {2 if dorder else 3}, v{dst}")
    a(f"v_lshlrev_b32 v{dst}, 6, v{dst}")
    a("v_bfe_u32 v7, v1, 4, 1")
    a(f"v_lshl_add_u32 v{dst}, v7, 5, v{dst}")
    a("v_and_b32 v7, 3, v1")
    a(f"v_lshl_add_u32 v{dst}, v7, 3, v{dst}")


def piece_voff(a, dst, stride):
    a(f"v_lshrrev_b32 v{dst}, 2, v1\nv_mul_u32_u24 v{dst}, {stride}, v{dst}\nv_and_b32 v7, 3, v1\nv_lshl_add_u32 v{dst}, v7, 4, v{dst}")


def poll(a, vaddr, soff, srd=SWS):
    lab = a.label("poll")
    a(f"{lab}:")
    a(f"buffer_load_dword v7, v{vaddr}, {s(srd, 4)}, {soff} offen sc1")
    a(f"s_sub_u32 s{sBUD}, s{sBUD}, 1")
    a(f"s_cbranch_scc0 {lab}_w")
    a(f"s_mov_b32 s{sBUD}, 0\ns_waitcnt vmcnt(0)\ns_branch {lab}_x")
    a(f"{lab}_w:")
    a("s_waitcnt vmcnt(0)")
    a("v_cmp_ne_u32 vcc, 0, v7")
    a("s_cmp_eq_u64 vcc, -1")
    a(f"s_cbranch_scc0 {lab}")
    a(f"{lab}_x:")


def set_flag(a, soff, srd=SWS):
    a("v_mov_b32 v6, 0\nv_mov_b32 v7, 1\ns_mov_b64 exec, 1")
    a(f"buffer_store_dword v7, v6, {s(srd, 4)}, {soff} offen sc1")
    a("s_mov_b64 exec, -1")


def mfma(a, d, A, B, C):
    a(f"v_mfma_f32_32x32x16_bf16 {v(d, 16)}, {v(A, 4)}, {v(B, 4)}, {'0' if C is None else v(C, 16)}")


def dma(a, vo, srd, soff, off=0, sc1=False):
    a(f"buffer_load_dwordx4 v{vo}, {s(srd, 4)}, {soff} offen{f' offset:{off}' if off else ''}{' sc1' if sc1 else ''} lds")


NSL = 5
A_W = NSL * 16 * K
A_CS = A_W + NSL * 12 * K
A_ST = A_CS + 512
QB = 104 * K
L_WO = 48 * K
L_PART = 96 * K
LDS = 160 * K


def w1_addr(u):
    return (112 * K + u * K) % LDS


def w2_addr(n):
    return (48 * K + 4 * K * n) % LDS


Q, KB, VB, SB, O, IDX, CB = 8, [12, 16], [20, 28], [36, 52], 68, 84, 96
XRES = 240


def attn_init(a):
    a(f"s_lshr_b32 s46, s{sW}, 2\ns_lshl_b32 s46, s46, 11")
    a("v_lshlrev_b32 v2, 4, v1\nv_add_u32 v4, s46, v2")
    a("v_and_b32 v5, 15, v1\nv_lshlrev_b32 v5, 4, v5\nv_lshrrev_b32 v7, 5, v1\nv_lshl_add_u32 v5, v7, 8, v5\nv_add_u32 v5, s46, v5")
    a(f"v_mov_b32 v{IDX}, 0xdddddddd")
    a(f"v_mov_b32 v7, {ONES:#x}\ns_mov_b32 s46, 0x00110000\ns_mov_b32 s47, 0x00110000")
    a(f"v_cndmask_b32 v{VB[0]}, 0, v7, s[46:47]")
    for r in range(1, 16):
        a(f"v_mov_b32 v{VB[0] + r}, v{VB[0]}")
    for r in range(16):
        a(f"v_mov_b32 v{O + r}, 0")
    a(f"s_cmp_lt_u32 s{sW}, 4")
    a(f"s_cselect_b64 {s(SWP, 2)}, {s(SWO, 2)}, {s(SW1, 2)}")
    a(f"s_cselect_b32 s{SWP + 2}, s{SWO + 2}, s{SW1 + 2}")
    a(f"s_mov_b32 s{SWP + 3}, 0x00020000")
    a(f"s_mov_b32 s47, {W1ROW}\ns_cselect_b32 s46, 1024, s47")
    piece_voff(a, 3, "s46")
    a("s_lshl_b32 s49, s46, 4")
    a(f"s_min_u32 s47, s{sW}, 6\ns_lshl_b32 s50, s47, 14\ns_add_u32 s50, s50, {L_WO}")
    a(f"s_lshr_b32 s46, s{sW}, 1\ns_and_b32 s47, s{sW}, 1")
    a(f"s_lshl_b32 s48, s46, 18\ns_lshl_b32 s51, s47, 6\ns_add_u32 s48, s48, s51\ns_and_b32 s51, s{sM}, 7\ns_lshl_b32 s51, s51, 7\ns_add_u32 s48, s48, s51")
    a(f"s_mul_i32 s51, s{sM}, 192")
    a(f"s_cmp_eq_u32 s{sW}, 5\ns_cselect_b32 s46, {16 * W1STEP}, 0\ns_add_u32 s51, s51, s46")
    a(f"s_cmp_ge_u32 s{sW}, 6\ns_cselect_b32 s46, 64, 0\ns_add_u32 s51, s51, s46")
    a(f"s_cmp_lt_u32 s{sW}, 4\ns_cselect_b32 s48, s48, s51")
    a(f"s_lshl_b32 s53, s{sW}, 11\ns_lshl_b32 s52, s{sJ}, 18\ns_add_u32 s52, s52, s53")
    if KV:
        a(f"s_add_u32 s52, s52, {KV}")
    a(f"s_lshl_b32 s51, s{sRA}, 14")
    a("s_mov_b32 s54, 0xffff\ns_mov_b32 s55, 0xffff")


def phase_a(a):
    AH = opt("ah", 2)
    a(f"s_cmp_ge_u32 s{sW}, 4")
    a("s_cbranch_scc0 .La_mfma")
    a(f"s_sub_u32 s46, s{sW}, 4")
    a("v_lshrrev_b32 v2, 3, v1\nv_lshlrev_b32 v2, 10, v2")
    a("v_lshrrev_b32 v3, 4, v1\nv_and_b32 v4, 7, v1\nv_xor_b32 v3, v3, v4\nv_lshl_add_u32 v2, v3, 4, v2")
    a("v_xor_b32 v3, 64, v2")
    a(f"v_add_u32 v4, {2 * 7168}, v2\nv_add_u32 v5, {3 * 7168}, v3\nv_add_u32 v3, {7168}, v3")
    piece_voff(a, 8, 3072)
    a(f"s_lshl_b32 s48, s{sRA}, 2\ns_add_u32 s48, s48, s46\ns_lshl_b32 s48, s48, 15")
    a(f"s_mul_i32 s49, s46, 49152\ns_lshl_b32 s47, s{sJ}, 6\ns_add_u32 s49, s49, s47")
    a(f"s_mul_i32 s50, s46, {NSL * 4096}")
    a(f"s_mul_i32 s51, s46, 3072\ns_add_u32 s51, s51, {A_W}")
    a("v_and_b32 v9, 3, v1\nv_lshlrev_b32 v9, 2, v9")
    a("s_waitcnt lgkmcnt(0)")
    vm = Cnt(a, "vmcnt", 63)

    def issue(c):
        slot = c % NSL
        a(f"s_add_u32 m0, s50, {slot * 4096}\ns_nop 0")
        for q in range(4):
            dma(a, 2 + q, SX, "s48", q * 1024)
        a(f"s_add_u32 m0, s51, {slot * 12288}\ns_add_u32 s48, s48, 128")
        for b in range(3):
            dma(a, 8, SWQ, "s49", b * 1024)
        a(f"s_add_u32 s49, s49, {64 * 3072}")
        vm.issue(c, 7)

    for c in range(AH):
        issue(c)
    stamp(a, 1)
    for c in range(8):
        vm.wait(c)
        if c == 7:
            a("s_mul_i32 s47, s2, 43\nv_add_u32 v10, s47, v1\nv_lshlrev_b32 v10, 7, v10")
            a("s_lshl_b32 s47, s2, 4\nv_add_u32 v11, s47, v1\nv_lshlrev_b32 v11, 7, v11")
            a("s_cmp_lg_u32 s46, 0\ns_cbranch_scc1 .La_notouch")
            a(f"buffer_load_dword v12, v10, {s(SW1, 4)}, 0 offen")
            a(f"buffer_load_dword v13, v10, {s(SW2, 4)}, 0 offen")
            a(f"buffer_load_dword v14, v11, {s(SWO, 4)}, 0 offen")
            a(".La_notouch:")
        if c in (0, 1, 7):
            stamp(a, {0: 2, 1: 3, 7: 4}[c])
        a("s_barrier")
        if c + AH < 8:
            issue(c + AH)
        if c + AH == 7:
            a(f"buffer_load_dword v15, v9, {s(SDBG, 4)}, 0 offen sc1")
            vm.issue(7)
    a("v_cmp_ne_u32 vcc, 0, v15\ns_cmp_eq_u64 vcc, -1\ns_cbranch_scc1 .La_cert")
    poll(a, 9, "0", SDBG)
    a(".La_cert:")
    attn_init(a)
    a(f"s_sub_u32 s46, s{sW}, 4\ns_lshl_b32 s46, s46, 10\ns_add_u32 s46, s46, {QB}\nv_add_u32 v6, s46, v2")
    a("s_barrier")
    a("s_barrier")
    a(f"ds_read_b128 {v(Q, 4)}, v6")
    a("s_branch .Lb0")

    a(".La_mfma:")
    ACC, GR, SUM, CSM, SEL = 16, 64, 80, 84, 128
    XB, WB = [96, 112], [100, 116]
    a("v_lshlrev_b32 v2, 4, v1")
    a("s_waitcnt lgkmcnt(0)")
    a("s_cmp_lg_u32 s2, 0\ns_cbranch_scc1 .La_nozero")
    for r in range(4):
        a(f"v_mov_b32 v{ACC + r}, 0")
    a(f"s_mul_i32 s46, s{sW}, 7168\ns_add_u32 s46, s46, {FL}\ns_add_u32 s47, s46, 4096")
    for p in range(7):
        a(f"buffer_store_dwordx4 {v(ACC, 4)}, v2, {s(SWS, 4)}, s{46 + (p >> 2)} offen offset:{(p & 3) * 1024} sc1")
    a(".La_nozero:")
    if opt("touch", 1):
        a("s_and_b32 s46, s2, 7\ns_lshr_b32 s47, s2, 3")
        a(f"s_cmp_eq_u32 s{sW}, 3\ns_cbranch_scc1 .La_t3")
        a("v_lshrrev_b32 v3, 2, v1\nv_mul_u32_u24 v3, 3072, v3\nv_and_b32 v4, 3, v1\nv_lshl_add_u32 v3, v4, 7, v3")
        a(f"s_mul_i32 s48, s47, 49152\ns_and_b32 s49, s46, 1\ns_lshl_b32 s49, s49, 9\ns_add_u32 s48, s48, s49\ns_lshl_b32 s49, s{sW}, 10\ns_add_u32 s48, s48, s49")
        a(f"buffer_load_dword v10, v3, {s(SWQ, 4)}, s48 offen")
        a(f"s_cmp_eq_u32 s{sW}, 2\ns_cbranch_scc1 .La_t4")
        a(f"s_lshr_b32 s48, s46, 1\ns_lshl_b32 s48, s48, 19\ns_lshl_b32 s49, s47, 14\ns_add_u32 s48, s48, s49\ns_lshl_b32 s49, s{sW}, 13\ns_add_u32 s48, s48, s49")
        a("v_lshlrev_b32 v3, 7, v1")
        a(f"buffer_load_dword v11, v3, {s(SX, 4)}, s48 offen")
        a("s_branch .La_t4")
        a(".La_t3:")
        if opt("codetouch", 1):
            a("s_getpc_b64 s[48:49]")
            a(".La_pc:")
            a("v_lshlrev_b32 v3, 7, v1")
            for p in range(3):
                a("v_min_u32 v4, .Lcode_end-.La_pc-4, v3")
                a(f"global_load_dword v{10 + p}, v4, s[48:49]")
                a("v_add_u32 v3, 8192, v3")
        if opt("pagetouch", 1):
            a("v_and_b32 v3, 7, v1\nv_lshlrev_b32 v3, 21, v3")
            a(f"buffer_load_dword v13, v3, {s(SWS, 4)}, 0 offen sc1")
            a("v_mov_b32 v3, 0")
            a(f"buffer_load_dword v14, v3, {s(SOUT, 4)}, 0 offen sc1")
        a(".La_t4:")
    a("v_and_b32 v8, 31, v1\nv_lshrrev_b32 v9, 5, v1")
    a("v_bfe_u32 v14, v1, 1, 3\nv_xor_b32 v14, v14, v9")
    a(f"s_mul_i32 s46, s{sW}, {NSL * 4096}\nv_lshlrev_b32 v15, 7, v8\nv_add_u32 v15, s46, v15")
    XA0, WA0 = 132, 136
    for st in range(4):
        a(f"v_xor_b32 v7, {2 * st}, v14\nv_lshl_add_u32 v{XA0 + st}, v7, 4, v15\nv_mov_b32 v{2 + st}, v{XA0 + st}")
    tr_addr(a, WA0, False)
    a(f"v_add_u32 v{WA0}, {A_W}, v{WA0}\nv_mov_b32 v6, v{WA0}")
    for r in range(ACC, CSM + 12):
        a(f"v_mov_b32 v{r}, 0")
    a(f"v_mov_b32 v7, {ONES:#x}\ns_mov_b32 s46, 0x10100101\ns_mov_b32 s47, 0x10100101")
    for r in range(4):
        a(f"v_cndmask_b32 v{SEL + r}, 0, v7, s[46:47]")
    a(f"v_lshlrev_b32 v137, 2, v8\nv_add_u32 v137, {A_CS}, v137")
    for b in range(3):
        a(f"ds_write_b32 v137, v{ACC} offset:{128 * b}")
    a("s_cmp_lg_u32 s2, 0\ns_cbranch_scc1 .La_nocert")
    a("s_waitcnt vmcnt(0)")
    a(f"s_lshl_b32 s46, s{sW}, 2")
    set_flag(a, "s46", SDBG)
    a(f"v_mov_b32 v6, v{WA0}")
    a(".La_nocert:")

    def rd_x(n):
        a(f"ds_read_b128 {v(XB[n & 1], 4)}, v{2 + (n & 3)}")

    def rd_w(n, b):
        for h in range(2):
            a(f"ds_read_b64_tr_b16 {v(WB[n & 1] + 4 * b + 2 * h, 2)}, v6 offset:{((n & 3) * 3 + b) * 1024 + h * 256}")

    def m16(d, B):
        a(f"v_mfma_f32_16x16x32_bf16 {v(d, 4)}, {v(SEL, 4)}, {v(B, 4)}, {v(d, 4)}")

    a("s_mov_b32 s46, 0\ns_mov_b32 s47, 0\ns_mov_b32 s48, 0")
    a("s_waitcnt lgkmcnt(0)")
    stamp(a, 1)
    a("s_barrier")
    stamp(a, 2)
    rd_x(0)
    for b in range(3):
        rd_w(0, b)
    a(".La_loop:")
    for n in range(4):
        x, w = XB[n & 1], WB[n & 1]
        a("s_waitcnt lgkmcnt(6)")
        mfma(a, GR, x, x, GR)
        if n == 3:
            a(f"s_add_u32 s47, s47, 4096\ns_add_u32 s48, s48, 12288\ns_cmp_eq_u32 s47, {NSL * 4096}")
            a("s_cselect_b32 s47, 0, s47\ns_cselect_b32 s48, 0, s48")
            for st in range(4):
                a(f"v_add_u32 v{2 + st}, s47, v{XA0 + st}")
            a(f"v_add_u32 v6, s48, v{WA0}")
            a("s_cmp_eq_u32 s46, 7\ns_cbranch_scc1 .La_nobar\ns_barrier\n.La_nobar:")
        rd_x(n + 1)
        m16(SUM, x)
        for b in range(3):
            a("s_waitcnt lgkmcnt(5)")
            if b < 2:
                mfma(a, ACC + 16 * b, w + 4 * b, x, ACC + 16 * b)
            else:
                mfma(a, ACC + 16 * b, x, w + 4 * b, ACC + 16 * b)
            rd_w(n + 1, b)
        a(f"s_cmp_lg_u32 s{sW}, {n}\ns_cbranch_scc1 .La_nocs{n}")
        for b in range(3):
            m16(CSM + 4 * b, w + 4 * b)
        a(f".La_nocs{n}:")
    a("s_add_u32 s46, s46, 1\ns_cmp_lt_u32 s46, 8\ns_cbranch_scc1 .La_loop")
    stamp(a, 3)
    T, U, TQ, UQ = 140, 141, 142, 143
    masks = [0xAAAAAAAA, 0xCCCCCCCC, 0xFF00FF00, 0xFFFF0000, 0xF0F0F0F0]
    for i, mk in enumerate(masks):
        a(f"s_mov_b32 s{46 + 2 * i}, {mk:#x}\ns_mov_b32 s{47 + 2 * i}, {mk:#x}")
    for lv in range(4):
        for r in range(8 >> lv):
            a(f"v_cndmask_b32 v{GR + r}, v{GR + 2 * r}, v{GR + 2 * r + 1}, {s(46 + 2 * lv, 2)}")
    a(f"v_mov_b32 v{GR + 1}, v{GR}")
    a(f"v_mul_f32 v{SUM}, {f32(1 / 512)}, v{SUM}")
    a("s_mov_b64 exec, 0xffffffff")
    for b in range(3):
        a(f"ds_add_f32 v137, v{CSM + 4 * b} offset:{128 * b}")
    a("s_mov_b64 exec, -1")
    a(f"v_permlane32_swap_b32 v{GR}, v{GR + 1}")
    a(f"s_lshl_b32 s46, s{sW}, 8\ns_add_u32 s46, s46, {A_ST}")
    a(f"v_cndmask_b32 v{GR}, v{GR}, v{GR + 1}, s[54:55]")
    a(f"v_mul_f32 v{GR}, {f32(1 / 512)}, v{GR}")
    a(f"v_fma_f32 v{GR}, -v{SUM}, v{SUM}, v{GR}")
    a(f"v_max_f32 v{GR}, 0, v{GR}")
    a(f"v_add_f32 v{GR}, {f32(EPS)}, v{GR}")
    a(f"v_rsq_f32 v{T}, v{GR}")
    a("s_mov_b32 s48, 0\ns_mov_b32 s49, -1")
    a(f"v_lshl_add_u32 v145, v1, 2, s46")
    a(f"v_mul_f32 v{U}, v{SUM}, v{T}")
    a(f"v_sub_f32 v{U}, 0, v{U}")
    a(f"v_cndmask_b32 v144, v{T}, v{U}, s[48:49]")
    a("ds_write_b32 v145, v144")
    a(f"v_mul_f32 v{TQ}, {f32(QS)}, v{T}\nv_mul_f32 v{UQ}, {f32(QS)}, v{U}")
    a("v_lshlrev_b32 v146, 4, v9")
    a("v_add_u32 v147, s46, v146")
    a(f"v_add_u32 v146, {A_CS}, v146")
    a("v_and_b32 v148, 0x33, v1\nv_bfe_u32 v7, v1, 2, 1\nv_lshl_or_b32 v148, v7, 3, v148\nv_bfe_u32 v7, v1, 3, 1\nv_lshl_or_b32 v148, v7, 2, v148\nv_lshlrev_b32 v148, 4, v148")
    a("v_and_b32 v149, 15, v1\nv_lshlrev_b32 v149, 4, v149\nv_lshl_add_u32 v149, v9, 8, v149\nv_bfe_u32 v7, v1, 4, 1\nv_lshl_add_u32 v149, v7, 11, v149")
    a(f"s_lshl_b32 s46, s{sW}, 12\nv_add_u32 v148, s46, v148\nv_add_u32 v149, s46, v149")
    a(f"s_lshl_b32 s46, s{sW}, 10\ns_add_u32 s46, s46, {QB}\nv_lshl_add_u32 v150, v1, 4, s46")
    a(f"s_lshl_b32 s56, s{sJ}, 18\ns_lshl_b32 s47, s{sRA}, 14\ns_add_u32 s56, s56, s47")
    if KV:
        a(f"s_add_u32 s56, s56, {KV}")
    a("s_waitcnt lgkmcnt(0)\ns_barrier")
    CK, CQ, VT, VU, CV = 96, 112, 152, 168, 151
    lg = Cnt(a, "lgkmcnt", 15)
    for g in range(4):
        a(f"ds_read_b128 {v(CK + 4 * g, 4)}, v146 offset:{128 + g * 32}")
    lg.issue("k", 4)
    a(f"ds_read_b32 v{CV}, v137 offset:256")
    for g in range(4):
        a(f"ds_read_b128 {v(VU + 4 * g, 4)}, v147 offset:{128 + g * 32}")
        a(f"ds_read_b128 {v(VT + 4 * g, 4)}, v147 offset:{g * 32}")
    lg.issue("v", 9)
    lg.wait("k")
    for g in range(4):
        a(f"ds_read_b128 {v(CQ + 4 * g, 4)}, v146 offset:{g * 32}")
    lg.issue("q", 4)
    for r in range(16):
        a(f"v_mul_f32 v{CK + r}, v{CK + r}, v{U}")
    for r in range(16):
        a(f"v_fmac_f32 v{CK + r}, v{ACC + 16 + r}, v{T}")
    for r in range(8):
        a(f"v_cvt_pk_bf16_f32 v{ACC + 16 + r}, v{CK + 2 * r}, v{CK + 2 * r + 1}")
    for hh in range(2):
        a(f"buffer_store_dwordx4 {v(ACC + 16 + 4 * hh, 4)}, v148, {s(SWS, 4)}, s56 offen offset:{2048 * hh} sc1")
    lg.wait("v")
    for r in range(16):
        a(f"v_mul_f32 v{VU + r}, v{VU + r}, v{CV}")
    for r in range(16):
        a(f"v_fmac_f32 v{VU + r}, v{ACC + 32 + r}, v{VT + r}")
    for r in range(8):
        a(f"v_cvt_pk_bf16_f32 v{ACC + 32 + r}, v{VU + 2 * r}, v{VU + 2 * r + 1}")
    for sub in range(2):
        a(f"buffer_store_dwordx4 {v(ACC + 32 + 4 * sub, 4)}, v149, {s(SWS, 4)}, s56 offen offset:{1024 + 512 * sub} sc1")
    for hh in range(2):
        a(f"ds_write_b128 v148, {v(ACC + 16 + 4 * hh, 4)} offset:{2048 * hh}")
        a(f"ds_write_b128 v149, {v(ACC + 32 + 4 * hh, 4)} offset:{1024 + 512 * hh}")
    lg.issue("w", 4)
    lg.wait("q")
    for r in range(16):
        a(f"v_mul_f32 v{CQ + r}, v{CQ + r}, v{UQ}")
    for r in range(16):
        a(f"v_fmac_f32 v{CQ + r}, v{ACC + r}, v{TQ}")
    for r in range(4, 8):
        a(f"v_cvt_pk_bf16_f32 v{Q + r}, v{CQ + 2 * r}, v{CQ + 2 * r + 1}")
    a(f"ds_write_b128 v150, {v(Q + 4, 4)}")
    for r in range(4):
        a(f"v_cvt_pk_bf16_f32 v{Q + r}, v{CQ + 2 * r}, v{CQ + 2 * r + 1}")
    a("s_waitcnt lgkmcnt(0)\ns_barrier")
    stamp(a, 4)
    attn_init(a)
    a(f"s_lshl_b32 s46, s{sRT}, 2\ns_lshr_b32 s47, s{sM}, 3\ns_lshl_b32 s47, s47, 1\ns_add_u32 s46, s46, s47\ns_and_b32 s47, s{sW}, 1\ns_add_u32 s46, s46, s47\ns_lshl_b32 s46, s46, 15")
    a(f"s_and_b32 s47, s{sM}, 7\ns_lshl_b32 s47, s47, 7\ns_add_u32 s46, s46, s47\ns_lshr_b32 s47, s{sW}, 1\ns_lshl_b32 s47, s47, 6\ns_add_u32 s57, s46, s47")
    a("v_and_b32 v85, 31, v1\nv_lshlrev_b32 v85, 10, v85\nv_lshrrev_b32 v7, 5, v1\nv_lshl_add_u32 v85, v7, 3, v85")
    a(f"s_lshl_b32 s46, s{sJ}, 8\ns_lshl_b32 s47, s{sRA}, 4\ns_add_u32 s46, s46, s47\ns_lshl_b32 s47, s{sW}, 2\ns_add_u32 s46, s46, s47\ns_add_u32 s46, s46, {FA}")
    a("s_waitcnt vmcnt(0)")
    set_flag(a, "s46")
    stamp(a, 5)
    for g in range(4):
        a(f"buffer_load_dwordx2 {v(XRES + 2 * g, 2)}, v85, {s(SX, 4)}, s57 offen offset:{16 * g}")


def phase_b(a):
    def rdK(t, off):
        a(f"ds_read_b128 {v(KB[t & 1], 4)}, v4 offset:{off}")

    def rdV(t, off):
        a("s_mov_b64 exec, s[54:55]")
        a(f"ds_read_b128 {v(VB[t & 1], 4)}, v5 offset:{off + 1024}")
        a(f"ds_read_b128 {v(VB[t & 1] + 4, 4)}, v5 offset:{off + 1536}")
        a("s_mov_b64 exec, -1")

    def qk(t, C=None):
        mfma(a, SB[t & 1], KB[t & 1], Q, C)

    def pv(t, h):
        a(f"v_smfmac_f32_32x32x32_bf16 {v(O, 16)}, {v(VB[t & 1] + 4 * h, 4)}, {v(SB[t & 1] + 8 * h, 8)}, v{IDX}")

    def ex(t, lo, hi):
        for r in range(lo, hi):
            a(f"v_exp_f32 v{SB[t & 1] + r}, v{SB[t & 1] + r}")

    def kvdma(slot):
        a("s_add_u32 s51, s51, 16384\ns_and_b32 s51, s51, 0x3ffff\ns_add_u32 s56, s51, s52")
        a(f"s_add_u32 m0, s53, {slot * 16384}\ns_nop 0")
        dma(a, 2, SWS, "s56", 0, True)
        dma(a, 2, SWS, "s56", 1024, True)

    def wdma():
        a("s_mov_b32 m0, s50\ns_add_u32 s50, s50, 1024")
        dma(a, 3, SWP, "s48")
        a("s_add_u32 s48, s48, s49")

    def start(off):
        rdK(0, off)
        rdK(1, off + 4096)
        rdV(0, off)
        a("s_waitcnt lgkmcnt(3)")
        qk(0)

    a(".Lb0:")
    start(0)
    a.nop(11)
    for t in range(4):
        a(f"s_setprio {3 - t}")
        ex(t, 0, 2)
        if t:
            pv(t - 1, 1)
        if t < 3:
            a("s_waitcnt lgkmcnt(2)")
        ex(t, 2, 6)
        if t < 3:
            qk(t + 1)
        if t < 2:
            rdK(t + 2, (t + 2) * 4096)
        ex(t, 6, 10)
        a(f"s_waitcnt lgkmcnt({1 if t < 2 else 0})")
        pv(t, 0)
        ex(t, 10, 12)
        if t < 3:
            rdV(t + 1, (t + 1) * 4096)
        ex(t, 12, 16)
    a("v_lshlrev_b32 v6, 2, v1")
    a(f"s_lshl_b32 s46, s{sJ}, 8\ns_add_u32 s46, s46, {FA}")
    pv(3, 1)
    stamp(a, 6)
    poll(a, 6, "s46")
    stamp(a, 7)
    kvdma(1)
    wdma()
    kvdma(2)
    wdma()
    for r in range(8, 16):
        a(f"v_mov_b32 v{SB[1] + r}, 0")
    a("s_mov_b32 s57, 0")
    a("s_waitcnt vmcnt(4)\ns_barrier")
    stamp(a, 8)
    start(16384)
    a.nop(11)
    a(".Lb_loop:")
    for q in range(3):
        cur, nxt = ((q + 1) % 3) * 16384, ((q + 2) % 3) * 16384

        def off(t):
            return cur + t * 4096 if t < 4 else nxt + (t - 4) * 4096

        for t in range(4):
            a(f"s_setprio {3 - t}")
            ex(t, 0, 2)
            pv(t - 1, 1)
            a("s_waitcnt lgkmcnt(2)")
            ex(t, 2, 6)
            qk(t + 1)
            if t == 2:
                a("s_waitcnt vmcnt(1)\ns_barrier")
            rdK(t + 2, off(t + 2))
            if t == 2:
                if q:
                    a(f"s_cmp_eq_u32 s57, 4\ns_cbranch_scc1 .Lb_nokv{q}")
                kvdma(q)
                if q == 1:
                    a(f".Lb_nokv{q}:")
                wdma()
                if q == 2:
                    a(f".Lb_nokv{q}:")
            ex(t, 6, 10)
            a("s_waitcnt lgkmcnt(1)")
            pv(t, 0)
            ex(t, 10, 12)
            rdV(t + 1, off(t + 1))
            ex(t, 12, 16)
    a("s_add_u32 s57, s57, 1\ns_cmp_lt_u32 s57, 5\ns_cbranch_scc1 .Lb_loop")
    pv(3, 1)
    stamp(a, 9)
    a("s_setprio 0")
    a(f"s_and_b32 s46, s{sW}, 3\ns_lshl_b32 s47, s{sRA}, 2\ns_add_u32 s46, s46, s47")
    a(f"s_lshr_b32 s47, s{sW}, 2\ns_lshl_b32 s48, s{sJ}, 1\ns_add_u32 s47, s47, s48")
    a(f"s_lshl_b32 s50, s46, 15\ns_lshl_b32 s48, s47, 10\ns_add_u32 s50, s50, s48\ns_add_u32 s50, s50, {OF}")
    a(f"s_lshl_b32 s51, s46, 7\ns_lshl_b32 s48, s47, 2\ns_add_u32 s51, s51, s48\ns_add_u32 s51, s51, {FB}")
    a(f"s_mov_b32 s46, {f32(2.0 ** -40)}\ns_mov_b32 s47, {f32(2.0 ** 40)}")
    a("s_waitcnt lgkmcnt(0)")
    a(f"v_cmp_le_f32 s[48:49], s46, v{O + 8}")
    a(f"v_cmp_ge_f32 vcc, s47, v{O + 8}")
    a(f"v_add_f32 v7, |v{O}|, |v{O + 1}|")
    for r in range(2, 8):
        a(f"v_add_f32 v7, v7, |v{O + r}|")
    a("s_and_b64 s[48:49], s[48:49], vcc")
    a(f"s_mov_b32 s46, {f32(2.0 ** 126)}")
    a("v_cmp_ge_f32 vcc, s46, v7")
    a(f"v_rcp_f32 v6, v{O + 8}")
    a("s_and_b64 s[48:49], s[48:49], vcc")
    a("s_cmp_eq_u64 s[48:49], -1")
    a("s_cbranch_scc0 .Lb_slow")
    a(".Lb_out:")
    for r in range(8):
        a(f"v_mul_f32 v{O + r}, v{O + r}, v6")
    for r in range(4):
        a(f"v_cvt_pk_bf16_f32 v{O + r}, v{O + 2 * r}, v{O + 2 * r + 1}")
    a(f"buffer_store_dwordx4 {v(O, 4)}, v2, {s(SWS, 4)}, s50 offen sc1")


def phase_b_slow(a):
    a(".Lb_slow:")
    a(f"s_lshl_b32 s46, s{sJ}, 18")
    if KV:
        a(f"s_add_u32 s46, s46, {KV}")
    a("s_mov_b32 s47, s46\ns_mov_b32 s48, 0\nv_mov_b32 v6, 0xff800000")
    a(".Lb_max:")
    a(f"buffer_load_dwordx4 {v(KB[0], 4)}, v4, {s(SWS, 4)}, s47 offen sc1")
    a("s_add_u32 s47, s47, 4096\ns_waitcnt vmcnt(0)")
    mfma(a, SB[0], KB[0], Q, None)
    a.nop(12)
    for r in range(0, 16, 2):
        a(f"v_max3_f32 v6, v6, v{SB[0] + r}, v{SB[0] + r + 1}")
    a("s_add_u32 s48, s48, 1\ns_cmp_lt_u32 s48, 64\ns_cbranch_scc1 .Lb_max")
    a("v_mov_b32 v7, v6")
    a.nop(2)
    a("v_permlane32_swap_b32 v6, v7")
    a.nop(1)
    a("v_max_f32 v6, v6, v7")
    for r in range(16):
        a(f"v_sub_f32 v{CB + r}, 0, v6\nv_mov_b32 v{O + r}, 0")
    a("s_mov_b32 s48, 0")
    a(".Lb_redo:")
    a(f"buffer_load_dwordx4 {v(KB[0], 4)}, v4, {s(SWS, 4)}, s46 offen sc1")
    a("s_mov_b64 exec, s[54:55]")
    for h in range(2):
        a(f"buffer_load_dwordx4 {v(VB[0] + 4 * h, 4)}, v5, {s(SWS, 4)}, s46 offen offset:{1024 + 512 * h} sc1")
    a("s_mov_b64 exec, -1")
    a("s_add_u32 s46, s46, 4096\ns_waitcnt vmcnt(0)")
    mfma(a, SB[0], KB[0], Q, CB)
    a.nop(12)
    for r in range(16):
        a(f"v_exp_f32 v{SB[0] + r}, v{SB[0] + r}")
    a.nop(2)
    for h in range(2):
        a(f"v_smfmac_f32_32x32x32_bf16 {v(O, 16)}, {v(VB[0] + 4 * h, 4)}, {v(SB[0] + 8 * h, 8)}, v{IDX}")
    a.nop(8)
    a("s_add_u32 s48, s48, 1\ns_cmp_lt_u32 s48, 64\ns_cbranch_scc1 .Lb_redo")
    a.nop(4)
    a(f"v_rcp_f32 v6, v{O + 8}")
    a("s_nop 0\ns_branch .Lb_out")


KEEP, SEND = 16, 32


def exchange(a, pre_barrier):
    a(f"s_lshl_b32 s46, s{sW}, 12\ns_add_u32 s47, s46, {L_PART}\nv_add_u32 v8, s47, v2")
    a(f"s_xor_b32 s46, s46, 8192\ns_add_u32 s46, s46, {L_PART}\nv_add_u32 v9, s46, v2")
    if pre_barrier:
        a("s_barrier")
    a.nop(5)
    for g in range(4):
        a(f"ds_write_b128 v8, {v(SEND + 4 * g, 4)} offset:{g * 1024}")
    a("s_waitcnt lgkmcnt(0)\ns_barrier")
    for g in range(4):
        a(f"ds_read_b128 {v(SEND + 4 * g, 4)}, v9 offset:{g * 1024}")
    for g in range(4):
        a(f"s_waitcnt lgkmcnt({3 - g})")
        for r in range(4):
            a(f"v_add_f32 v{KEEP + 4 * g + r}, v{KEEP + 4 * g + r}, v{SEND + 4 * g + r}")


def w2_src(a, dst, wreg):
    a(f"s_lshr_b32 s46, {wreg}, 1\ns_mul_i32 s{dst}, s46, {43 * 16384}\ns_and_b32 s46, {wreg}, 1\ns_lshl_b32 s46, s46, 6\ns_add_u32 s{dst}, s{dst}, s46")
    a(f"s_and_b32 s46, s{sM}, 7\ns_lshl_b32 s46, s46, 7\ns_add_u32 s{dst}, s{dst}, s46")


def phase_ce(a):
    W, FR = 48, 176
    DC, DE = opt("dc", 10), opt("de", 12)
    piece_voff(a, 3, W1ROW)
    tr_addr(a, 10, True)
    a(f"s_lshr_b32 s57, s{sW}, 1")
    a(f"s_mul_i32 s46, s57, {48 * K}\ns_add_u32 s46, s46, {L_WO}\nv_add_u32 v4, s46, v10")
    a(f"s_lshl_b32 s46, s57, 14\ns_add_u32 s46, s46, {L_WO + 16 * K}\nv_add_u32 v5, s46, v10")
    a(f"s_mul_i32 s48, s{sM}, 192\ns_mul_i32 s46, s{sW}, {W1STEP}\ns_add_u32 s48, s48, s46")
    a(f"s_add_u32 s49, s48, 128\ns_add_u32 s48, s48, {64 + 16 * W1STEP}\ns_lshl_b32 s50, s{sW}, 10")
    a(f"s_lshl_b32 s56, s{sRT}, 2\ns_lshr_b32 s47, s{sM}, 3\ns_lshl_b32 s47, s47, 1\ns_add_u32 s56, s56, s47\ns_and_b32 s47, s{sW}, 1\ns_add_u32 s56, s56, s47")
    a("s_waitcnt vmcnt(0)")
    set_flag(a, "s51")
    a("s_barrier")
    stamp(a, 10)
    a("s_setprio 2")
    for p in range(16):
        if p < 12:
            reg = 48 if p < 4 else 49
            a(f"s_add_u32 m0, s50, {p * 4096}\ns_nop 0")
            dma(a, 3, SW1, f"s{reg}")
            a(f"s_add_u32 s{reg}, s{reg}, {4 * W1STEP}")
        for b in range(2):
            for h in range(2):
                a(f"ds_read_b64_tr_b16 {v(W + 8 * p + 4 * b + 2 * h, 2)}, v{4 + b} offset:{p * 1024 + h * 512}")
        if p < 8:
            a(f"v_lshlrev_b32 v{KEEP + 2 * p}, 16, v{XRES + p}\nv_and_b32 v{KEEP + 2 * p + 1}, 0xffff0000, v{XRES + p}")
    a("v_and_b32 v6, 15, v1\nv_lshlrev_b32 v6, 2, v6")
    a(f"s_lshl_b32 s46, s56, 7\ns_lshl_b32 s47, s57, 6\ns_add_u32 s46, s46, s47\ns_add_u32 s46, s46, {FB}")
    a(f"s_lshl_b32 s48, s56, 15\ns_lshl_b32 s47, s57, 14\ns_add_u32 s48, s48, s47\ns_add_u32 s48, s48, {OF}")
    a("s_waitcnt lgkmcnt(0)\ns_barrier")
    poll(a, 6, "s46")
    stamp(a, 11)
    vm = Cnt(a, "vmcnt", 63)

    def ld(k, reg):
        a(f"buffer_load_dwordx4 {v(reg, 4)}, v2, {s(SWS, 4)}, s48 offen offset:{(k & 3) * 1024} sc1")
        if (k & 3) == 3:
            a("s_add_u32 s48, s48, 4096")
        vm.issue(k)

    for k in range(DC):
        ld(k, FR + 4 * k)
    for k in range(16):
        vm.wait(k)
        mfma(a, SEND, W + 8 * k + 4, FR + 4 * k, SEND if k else None)
        mfma(a, KEEP, W + 8 * k, FR + 4 * k, KEEP)
        if k + DC < 16:
            ld(k + DC, FR + 4 * (k + DC))
    stamp(a, 12)
    exchange(a, False)
    stamp(a, 13)
    HB = 48
    for p in range(8):
        a(f"v_cvt_pk_bf16_f32 v{HB + p}, v{KEEP + 2 * p}, v{KEEP + 2 * p + 1}")
    a(f"s_and_b32 s47, s{sM}, 7\ns_lshl_b32 s47, s47, 1\ns_add_u32 s47, s47, s57")
    a(f"s_lshl_b32 s46, s56, 15\ns_lshl_b32 s48, s47, 11\ns_add_u32 s46, s46, s48\ns_add_u32 s46, s46, {HF}")
    for k in range(2):
        a(f"buffer_store_dwordx4 {v(HB + 4 * k, 4)}, v2, {s(SWS, 4)}, s46 offen offset:{1024 * k} sc1")
    a(f"v_add_f32 v56, v{KEEP}, v{KEEP + 1}\nv_mul_f32 v57, v{KEEP}, v{KEEP}\nv_add_f32 v58, v{KEEP + 2}, v{KEEP + 3}\nv_mul_f32 v59, v{KEEP + 1}, v{KEEP + 1}")
    for r in range(2, 16):
        if r >= 4:
            a(f"v_add_f32 v{56 + 2 * (r & 1)}, v{56 + 2 * (r & 1)}, v{KEEP + r}")
        a(f"v_fmac_f32 v{57 + 2 * (r & 1)}, v{KEEP + r}, v{KEEP + r}")
    a("v_add_f32 v56, v56, v58\nv_add_f32 v57, v57, v59")
    a(f"s_lshl_b32 s46, s56, 12\ns_lshl_b32 s48, s47, 8\ns_add_u32 s46, s46, s48\ns_add_u32 s46, s46, {ST}")
    a("v_permlane32_swap_b32 v56, v57")
    a("v_lshlrev_b32 v8, 2, v1")
    a("v_add_f32 v56, v56, v57")
    a(f"buffer_store_dword v56, v8, {s(SWS, 4)}, s46 offen sc1")
    a(f"s_lshl_b32 s46, s56, 7\ns_lshl_b32 s48, s47, 2\ns_add_u32 s51, s46, s48\ns_add_u32 s51, s51, {FC}")
    piece_voff(a, 3, 1024)
    w2_src(a, 48, f"s{sW}")
    a(f"s_add_u32 s48, s48, {12 * 16384}")
    a(f"s_mul_i32 s46, s57, 3072\nv_add_u32 v4, s46, v10\ns_lshl_b32 s46, s57, 10\ns_add_u32 s46, s46, 1024\nv_add_u32 v5, s46, v10")
    a(f"v_add_u32 v11, {64 * K}, v4\nv_add_u32 v12, {64 * K}, v5\nv_add_u32 v13, {128 * K}, v4\nv_add_u32 v14, {128 * K}, v5")
    a("s_waitcnt vmcnt(0)")
    set_flag(a, "s51")
    stamp(a, 14)
    a("s_setprio 0")

    def w2_batch(n0, n1):
        for n in range(n0, n1):
            a(f"s_add_u32 m0, s50, {w2_addr(n)}\ns_nop 0")
            dma(a, 3, SW2, "s48")
            a("s_add_u32 s48, s48, 16384")

    AK, AS = [4, 11, 13], [5, 12, 14]

    def rd_w(n, reg):
        ad = w2_addr(n)
        for b in range(2):
            for h in range(2):
                a(f"ds_read_b64_tr_b16 {v(reg + 4 * b + 2 * h, 2)}, v{(AK, AS)[b][ad >> 16]} offset:{(ad & 65535) + h * 512}")

    WP, WB, FR = 48, [72, 80], 88
    a("s_barrier")
    w2_batch(12, 32)
    for n in range(3):
        rd_w(n, WP + 8 * n)
    a("s_waitcnt lgkmcnt(0)\ns_barrier")
    w2_batch(32, 43)
    a("v_and_b32 v6, 7, v1\nv_lshlrev_b32 v6, 2, v6")
    a(f"s_lshl_b32 s46, s56, 7\ns_mul_i32 s47, s57, 28\ns_add_u32 s46, s46, s47\ns_add_u32 s46, s46, {FD}")
    a(f"s_mul_i32 s48, s56, {86 * K}\ns_mul_i32 s47, s57, {43 * K}\ns_add_u32 s48, s48, s47\ns_add_u32 s48, s48, {FF}")
    a("s_waitcnt vmcnt(0)\ns_barrier")
    stamp(a, 15)
    a("s_setprio 2")
    rd_w(3, WB[1])
    poll(a, 6, "s46")
    stamp(a, 16)
    NW = DE + 1
    for k in range(DE):
        ld(k, FR + 4 * (k % NW))
    for n in range(43):
        w = WP + 8 * n if n < 3 else WB[n & 1]
        if 3 <= n < 42:
            rd_w(n + 1, WB[(n + 1) & 1])
        left = vm.left(n)
        vm.q = vm.q[len(vm.q) - left:] if left else []
        lgk = "" if n < 3 else f" lgkmcnt({4 if n < 42 else 0})"
        a(f"s_waitcnt vmcnt({left}){lgk}")
        mfma(a, SEND, w + 4, FR + 4 * (n % NW), SEND if n else None)
        mfma(a, KEEP, w, FR + 4 * (n % NW), KEEP)
        if n + DE < 43:
            ld(n + DE, FR + 4 * ((n + DE) % NW))
    stamp(a, 17)
    exchange(a, True)
    a("v_and_b32 v8, 31, v1\nv_lshrrev_b32 v9, 5, v1\nv_lshlrev_b32 v8, 10, v8\nv_lshl_add_u32 v8, v9, 4, v8")
    a(f"s_lshl_b32 s46, s56, 15\ns_and_b32 s47, s{sM}, 7\ns_lshl_b32 s47, s47, 7\ns_add_u32 s46, s46, s47\ns_lshl_b32 s47, s57, 6\ns_add_u32 s46, s46, s47")
    for p in range(8):
        a(f"v_cvt_pk_bf16_f32 v{KEEP + p}, v{KEEP + 2 * p}, v{KEEP + 2 * p + 1}")
    a.nop(2)
    for k in range(2):
        a(f"v_permlane32_swap_b32 v{KEEP + 4 * k}, v{KEEP + 2 + 4 * k}")
        a(f"v_permlane32_swap_b32 v{KEEP + 1 + 4 * k}, v{KEEP + 3 + 4 * k}")
    for k in range(2):
        a(f"buffer_store_dwordx4 {v(KEEP + 4 * k, 4)}, v8, {s(SOUT, 4)}, s46 offen offset:{32 * k}")
    stamp(a, 18)
    stamp_flush(a)
    a("s_endpgm")


def phase_d(a):
    WB, ACC, CS, FR = 12, 28, 76, 124
    NM, NL, IRS = 252, 253, 254
    DD = opt("dd", 12)
    ON = ACC
    a(".Ld:")
    a("s_nop 0")
    for r in range(48):
        a(f"v_mov_b32 v{CS + r}, 0")
    for r in range(4):
        a(f"v_mov_b32 v{ON + r}, {ONES:#x}")
    tr_addr(a, 4, True)
    a(f"v_add_u32 v5, {112 * K}, v4\nv_mov_b32 v8, v5")
    piece_voff(a, 3, 1024)
    a(f"s_sub_u32 s57, s{sW}, 4")
    w2_src(a, 48, "s57")
    a(f"s_lshl_b32 s50, s57, 10\ns_add_u32 s50, s50, {w2_addr(0)}")
    a(f"s_lshl_b32 s56, s{sRT}, 2\ns_add_u32 s56, s56, s57")
    a("s_waitcnt vmcnt(0)")
    set_flag(a, "s51")
    a("s_barrier")
    stamp(a, 10)

    def cs_rd(i, off):
        for h in range(2):
            a(f"ds_read_b64_tr_b16 {v(WB + 4 * i + 2 * h, 2)}, v8 offset:{off + h * 512}")

    def cs_loop(b, iters, with_dma):
        lab = a.label("cs")
        a(f"s_mov_b32 s46, {iters}")
        a(f"{lab}:")
        for i in range(4):
            a("s_waitcnt lgkmcnt(4)")
            mfma(a, CS + 16 * b, WB + 4 * i, ON, CS + 16 * b)
            cs_rd((i + 3) & 3, (i + 3) * 1024)
            if with_dma and i == 1:
                a("s_mov_b32 m0, s50\ns_add_u32 s50, s50, 4096")
                dma(a, 3, SW2, "s48")
                a("s_add_u32 s48, s48, 16384")
        a("v_add_u32 v8, 4096, v8")
        a(f"s_sub_u32 s46, s46, 1\ns_cmp_lg_u32 s46, 0\ns_cbranch_scc1 {lab}")

    for i in range(3):
        cs_rd(i, i * 1024)
    cs_loop(0, 8, False)
    a("s_barrier")
    cs_loop(1, 4, False)
    a("v_mov_b32 v8, v4")
    a("s_waitcnt lgkmcnt(0)")
    stamp(a, 11)
    a("s_barrier")
    for i in range(3):
        cs_rd(i, i * 1024)
    cs_loop(1, 4, True)
    cs_loop(2, 8, True)
    a("v_and_b32 v6, 15, v1\nv_lshlrev_b32 v6, 2, v6\nv_lshlrev_b32 v9, 2, v1")
    a(f"s_lshl_b32 s46, s56, 7\ns_add_u32 s46, s46, {FC}")
    a(f"s_lshl_b32 s48, s56, 15\ns_add_u32 s48, s48, {HF}")
    a(f"s_lshl_b32 s49, s56, 12\ns_add_u32 s49, s49, {ST}")
    a(f"s_mul_i32 s50, s56, {86 * K}\ns_mul_i32 s47, s{sM}, 6144\ns_add_u32 s50, s50, s47\ns_add_u32 s50, s50, {FF}")
    a(f"s_lshl_b32 s51, s56, 7\ns_lshl_b32 s47, s{sM}, 2\ns_add_u32 s51, s51, s47\ns_add_u32 s51, s51, {FD}")
    a("s_waitcnt lgkmcnt(0)")
    a(f"s_cmp_eq_u32 s{sM}, 15\ns_cbranch_scc1 .Ld_idle")
    lg = Cnt(a, "lgkmcnt", 15)
    vm = Cnt(a, "vmcnt", 63)

    def rd_w(b, k, reg):
        ad = w1_addr(32 * b + k)
        base, off = (5, ad - 112 * K) if ad >= 112 * K else (4, ad)
        for h in range(2):
            a(f"ds_read_b64_tr_b16 {v(reg + 2 * h, 2)}, v{base} offset:{off + h * 512}")
        lg.issue((b, k), 2)

    def ld(k):
        a(f"buffer_load_dwordx4 {v(FR + 4 * k, 4)}, v2, {s(SWS, 4)}, s48 offen offset:{(k & 3) * 1024} sc1")
        if (k & 3) == 3:
            a("s_add_u32 s48, s48, 4096")
        vm.issue(k)

    for b in range(2):
        rd_w(b, 0, WB + 4 * b)
    stamp(a, 12)
    a("s_setprio 2")
    poll(a, 6, "s46")
    stamp(a, 13)
    for k in range(DD):
        ld(k)
    SP = ACC + 32
    nst = 0
    P2 = lambda k: WB + 4 * (k & 3)
    for n in range(32):
        buf = WB + 8 * (n & 1)
        if n < 31:
            for b in range(2):
                rd_w(b, n + 1, WB + 8 * ((n + 1) & 1) + 4 * b)
        vm.wait(n)
        lg.wait((0, n))
        mfma(a, ACC, buf, FR + 4 * n, ACC if n else None)
        if n == 31:
            rd_w(2, 0, P2(0))
            rd_w(2, 1, P2(1))
        lg.wait((1, n))
        mfma(a, ACC + 16, buf + 4, FR + 4 * n, ACC + 16 if n else None)
        if n + DD < 32:
            ld(n + DD)
        elif nst < 16:
            for _ in range(4):
                a(f"buffer_load_dword v{SP + nst}, v9, {s(SWS, 4)}, s49 offen offset:{256 * nst} sc1")
                vm.issue("st")
                nst += 1
        if n == 29:
            vm.wait("st")
            for w_ in (8, 4, 2, 1):
                for r in range(w_):
                    a(f"v_add_f32 v{SP + r}, v{SP + r}, v{SP + r + w_}")
            a(f"v_mov_b32 v{SP + 1}, v{SP}")
        if n == 30:
            a(f"v_permlane32_swap_b32 v{SP}, v{SP + 1}")
            a("s_nop 0")
            a(f"v_mul_f32 v{NM}, {f32(-1 / 512)}, v{SP}")
            a(f"v_mul_f32 v{IRS}, {f32(1 / 512)}, v{SP + 1}")
            a(f"v_fma_f32 v{IRS}, -v{NM}, v{NM}, v{IRS}")
            a(f"v_max_f32 v{IRS}, 0, v{IRS}")
            a(f"v_add_f32 v{IRS}, {f32(EPS)}, v{IRS}")
            a(f"v_rsq_f32 v{NL}, v{IRS}")
            a(f"v_sqrt_f32 v{IRS}, v{IRS}")
            for r in range(16):
                a(f"v_mul_f32 v{ACC + 32 + r}, v{CS + 32 + r}, v{NM}")
            a(f"v_mul_f32 v{NL}, {f32(-LOG2E)}, v{NL}")
    assert nst == 16
    stamp(a, 14)
    a("s_barrier")

    def silu_ops(A, C, with_mean):
        ops = []
        if with_mean:
            ops.append(f"v_fmac_f32 v{A}, v{C}, v{NM}")
        ops += [f"v_mul_f32 v{C}, v{A}, v{NL}", f"v_exp_f32 v{C}, v{C}", f"v_fma_f32 v{C}, v{C}, v{IRS}, v{IRS}",
                f"v_rcp_f32 v{C}, v{C}", f"v_mul_f32 v{C}, v{A}, v{C}"]
        return ops

    def store(b, k):
        lab = None
        if b:
            lab = a.label("nost")
            a(f"s_cmp_eq_u32 s{sM}, 14\ns_cbranch_scc1 {lab}")
        off = (2 * b + k) * 1024
        sreg = "s50" if off < 4096 else "s47"
        a(f"buffer_store_dwordx4 {v(ACC + 16 * b + 4 * k, 4)}, v2, {s(SWS, 4)}, {sreg} offen offset:{off & 4095} sc1")
        if lab:
            a(f"{lab}:")

    a("s_add_u32 s47, s50, 4096")
    ch = [silu_ops(ACC + i, CS + i, True) for i in range(32)]
    for n in range(36):
        if n < 32:
            if n + 2 < 32:
                rd_w(2, n + 2, P2(n + 2))
            lg.wait((2, n))
            mfma(a, ACC + 32, P2(n), FR + 4 * n, ACC + 32)
        else:
            assert not lg.q
        if n == 32:
            stamp(a, 15)
        i = n - 1
        if 0 <= i < 32:
            for op in ch[i][0:3]:
                a(op)
        if 0 <= i - 2 < 32:
            if i >= 33:
                a("s_nop 0")
            a(ch[i - 2][5])
        if 0 <= i - 1 < 32:
            for op in ch[i - 1][3:5]:
                a(op)
        d = i - 2
        if d >= 1 and d & 1:
            b, r = d >> 4, (d & 15) >> 1
            a(f"v_cvt_pk_bf16_f32 v{ACC + 16 * b + r}, v{CS + d - 1}, v{CS + d}")
            if (r & 3) == 3:
                store(b, r >> 2)
    ch = [silu_ops(ACC + 32 + i, CS + 32 + i, False) for i in range(16)]
    for st in range(5):
        for i in range(16):
            a(ch[i][st])
    for r in range(8):
        a(f"v_cvt_pk_bf16_f32 v{ACC + 32 + r}, v{CS + 32 + 2 * r}, v{CS + 32 + 2 * r + 1}")
        if (r & 3) == 3:
            store(2, r >> 2)
    a("s_barrier")
    stamp(a, 16)
    a("s_waitcnt vmcnt(0)")
    set_flag(a, "s51")
    stamp(a, 17)
    a(".Ld_tail:")
    a("s_barrier\ns_barrier\ns_barrier")
    stamp_flush(a)
    a("s_endpgm")
    a(".Ld_idle:")
    a("s_waitcnt vmcnt(0)\ns_barrier\ns_barrier\ns_branch .Ld_tail")


def build():
    hdr = open(os.path.join(os.path.dirname(os.path.abspath(__file__)), "header.txt")).read()
    a = Asm()
    name = NAME + "_kernel"
    a('.amdgcn_target "amdgcn-amd-amdhsa--gfx950"\n.text')
    a(f".globl {name}\n.p2align 8\n.type {name},@function")
    a(f"{name}:")
    a("s_cmp_ge_u32 s2, 256\ns_cbranch_scc1 .Lend")
    if STAMP:
        for i in range(NST):
            a(f"s_mov_b64 {s(SST + 2 * i, 2)}, 0")
    stamp(a, 0)
    for d, off, nb in ((SX, 0, X_BYTES), (SWQ, 8, 512 * 3072), (SWS, 64, WS_USED), (SWO, 16, 512 * 1024), (SW1, 32, 512 * W1ROW),
                       (SW2, 40, 1376 * 1024), (SOUT, 48, X_BYTES), (SDBG, 56, 256)):
        a(f"s_load_dwordx2 {s(d, 2)}, s[0:1], {off}")
        a(f"s_mov_b32 s{d + 2}, {nb}\ns_mov_b32 s{d + 3}, 0x00020000")
    a("v_lshrrev_b32 v2, 6, v0\nv_and_b32 v1, 63, v0")
    a(f"v_readfirstlane_b32 s{sW}, v2")
    a("s_and_b32 s46, s2, 7\ns_lshr_b32 s47, s2, 3")
    a(f"s_lshr_b32 s{sRA}, s46, 1\ns_lshl_b32 s{sRA}, s{sRA}, 2\ns_lshr_b32 s48, s47, 3\ns_add_u32 s{sRA}, s{sRA}, s48")
    a(f"s_and_b32 s{sJ}, s46, 1\ns_lshl_b32 s{sJ}, s{sJ}, 3\ns_and_b32 s48, s47, 7\ns_add_u32 s{sJ}, s{sJ}, s48")
    a(f"s_lshl_b32 s{sRT}, s46, 1\ns_lshr_b32 s48, s47, 4\ns_add_u32 s{sRT}, s{sRT}, s48\ns_and_b32 s{sM}, s47, 15")
    a(f"s_mov_b32 s{sBUD}, 0x8000")
    phase_a(a)
    phase_b(a)
    a(f"s_cmp_ge_u32 s{sW}, 4\ns_cbranch_scc1 .Ld")
    phase_ce(a)
    phase_d(a)
    phase_b_slow(a)
    a(".Lend:\ns_endpgm\n.Lcode_end:")
    a('.section .rodata,"a"')
    a(f""".p2align 6
.amdhsa_kernel {name}
.amdhsa_next_free_vgpr 256
.amdhsa_next_free_sgpr 102
.amdhsa_accum_offset 256
.amdhsa_group_segment_fixed_size 0
.amdhsa_kernarg_size 72
.amdhsa_user_sgpr_count 2
.amdhsa_user_sgpr_kernarg_segment_ptr 1
.amdhsa_system_sgpr_workgroup_id_x 1
.amdhsa_float_denorm_mode_32 3
.end_amdhsa_kernel""")
    hdr += f"; @launch grid=(256,1,1) block=(512,1,1) lds={LDS}\n"
    return hdr + a.text()


if __name__ == "__main__":
    txt = build()
    probs = check(txt)
    for p in probs:
        print("HAZARD", p)
    open(sys.argv[1], "w").write(txt)
    print("wrote", sys.argv[1], len(txt), "bytes;", len(probs), "hazards")
```

```python
import sys, os, struct
sys.path.insert(0, os.path.dirname(os.path.abspath(__file__)))
from asmlib import Asm, v, s, check

NAME = "sequential_preLN__mha_block__dense_activation_silu__prompt"
K = 1024
MB = 1 << 20
KV, OF, HF, FF, ST, FL = 0, 4 * MB, 6 * MB, 8 * MB, 14 * MB, 15 * MB
FA, FB, FC, FD = FL, FL + 4 * K, FL + 12 * K, FL + 20 * K
WS_USED = 16 * MB
STAMP = int(os.environ.get("STAMP", "0"))
OPT = dict(kv.split("=") for kv in os.environ.get("OPT", "").split(",") if kv)
NST, SST = 22, 58
if STAMP:
    WS_USED = 32 * MB
X_BYTES = 2048 * 1024
ONES = 0x3F803F80
EPS = 1e-5
LOG2E = 1.4426950408889634
QS = 0.25 * LOG2E
W1ROW = 2752
W1STEP = 16 * W1ROW

SX, SWQ, SWS, SWO, SW1, SW2, SOUT, SDBG, SWP = 4, 8, 12, 16, 20, 24, 28, 32, 36
sW, sRA, sJ, sRT, sM, sBUD = 40, 41, 42, 43, 44, 45


def opt(name, default):
    return int(OPT.get(name, default))


def f32(x):
    return "0x%08x" % struct.unpack("<I", struct.pack("<f", x))[0]


class Cnt:
    def __init__(self, a, name, cap):
        self.a, self.name, self.cap, self.q = a, name, cap, []

    def issue(self, tag, n=1):
        self.q += [tag] * n

    def left(self, tag):
        idx = [i for i, t in enumerate(self.q) if t == tag]
        if not idx:
            return None
        return min(len(self.q) - 1 - idx[-1], self.cap)

    def wait(self, tag):
        n = self.left(tag)
        if n is None:
            return
        self.a(f"s_waitcnt {self.name}({n})")
        self.q = self.q[len(self.q) - n:] if n else []


def stamp(a, i):
    if STAMP:
        a(f"s_memrealtime {s(SST + 2 * i, 2)}")


def stamp_flush(a):
    if not STAMP:
        return
    a("s_waitcnt vmcnt(0)")
    stamp(a, NST - 1)
    a(f"s_lshl_b32 s47, s2, 3\ns_add_u32 s47, s47, s{sW}\ns_mul_i32 s47, s47, {8 * NST}\ns_add_u32 s47, s47, {24 * MB}")
    a("s_waitcnt lgkmcnt(0)\nv_mov_b32 v4, 0")
    for i in range(NST):
        a(f"v_mov_b32 v2, s{SST + 2 * i}\nv_mov_b32 v3, s{SST + 1 + 2 * i}")
        a(f"buffer_store_dwordx2 v[2:3], v4, {s(SWS, 4)}, s47 offen offset:{8 * i}")
        a("s_nop 1")


def tr_addr(a, dst, dorder):
    a(f"v_bfe_u32 v{dst}, v1, 2, 2")
    a("v_lshrrev_b32 v7, 5, v1")
    a(f"v_lshl_add_u32 v{dst}, v7, {2 if dorder else 3}, v{dst}")
    a(f"v_lshlrev_b32 v{dst}, 6, v{dst}")
    a("v_bfe_u32 v7, v1, 4, 1")
    a(f"v_lshl_add_u32 v{dst}, v7, 5, v{dst}")
    a("v_and_b32 v7, 3, v1")
    a(f"v_lshl_add_u32 v{dst}, v7, 3, v{dst}")


def piece_voff(a, dst, stride):
    a(f"v_lshrrev_b32 v{dst}, 2, v1\nv_mul_u32_u24 v{dst}, {stride}, v{dst}\nv_and_b32 v7, 3, v1\nv_lshl_add_u32 v{dst}, v7, 4, v{dst}")


def poll(a, vaddr, soff, srd=SWS):
    lab = a.label("poll")
    a(f"{lab}:")
    a(f"buffer_load_dword v7, v{vaddr}, {s(srd, 4)}, {soff} offen sc1")
    a(f"s_sub_u32 s{sBUD}, s{sBUD}, 1")
    a(f"s_cbranch_scc0 {lab}_w")
    a(f"s_mov_b32 s{sBUD}, 0\ns_waitcnt vmcnt(0)\ns_branch {lab}_x")
    a(f"{lab}_w:")
    a("s_waitcnt vmcnt(0)")
    a("v_cmp_ne_u32 vcc, 0, v7")
    a("s_cmp_eq_u64 vcc, -1")
    a(f"s_cbranch_scc0 {lab}")
    a(f"{lab}_x:")


def set_flag(a, soff, srd=SWS):
    a("v_mov_b32 v6, 0\nv_mov_b32 v7, 1\ns_mov_b64 exec, 1")
    a(f"buffer_store_dword v7, v6, {s(srd, 4)}, {soff} offen sc1")
    a("s_mov_b64 exec, -1")


def mfma(a, d, A, B, C):
    a(f"v_mfma_f32_32x32x16_bf16 {v(d, 16)}, {v(A, 4)}, {v(B, 4)}, {'0' if C is None else v(C, 16)}")


def dma(a, vo, srd, soff, off=0, sc1=False):
    a(f"buffer_load_dwordx4 v{vo}, {s(srd, 4)}, {soff} offen{f' offset:{off}' if off else ''}{' sc1' if sc1 else ''} lds")


NSL = 5
A_W = NSL * 16 * K
A_CS = A_W + NSL * 12 * K
A_ST = A_CS + 512
QB = 104 * K
L_WO = 48 * K
L_PART = 96 * K
LDS = 160 * K


def w1_addr(u):
    return (112 * K + u * K) % LDS


def w2_addr(n):
    return (48 * K + 4 * K * n) % LDS


Q, KB, VB, SB, O, IDX, CB = 8, [12, 16], [20, 28], [36, 52], 68, 84, 96
XRES = 240


def attn_init(a):
    a(f"s_lshr_b32 s46, s{sW}, 2\ns_lshl_b32 s46, s46, 11")
    a("v_lshlrev_b32 v2, 4, v1\nv_add_u32 v4, s46, v2")
    a("v_and_b32 v5, 15, v1\nv_lshlrev_b32 v5, 4, v5\nv_lshrrev_b32 v7, 5, v1\nv_lshl_add_u32 v5, v7, 8, v5\nv_add_u32 v5, s46, v5")
    a(f"v_mov_b32 v{IDX}, 0xdddddddd")
    a(f"v_mov_b32 v7, {ONES:#x}\ns_mov_b32 s46, 0x00110000\ns_mov_b32 s47, 0x00110000")
    a(f"v_cndmask_b32 v{VB[0]}, 0, v7, s[46:47]")
    for r in range(1, 16):
        a(f"v_mov_b32 v{VB[0] + r}, v{VB[0]}")
    for r in range(16):
        a(f"v_mov_b32 v{O + r}, 0")
    a(f"s_cmp_lt_u32 s{sW}, 4")
    a(f"s_cselect_b64 {s(SWP, 2)}, {s(SWO, 2)}, {s(SW1, 2)}")
    a(f"s_cselect_b32 s{SWP + 2}, s{SWO + 2}, s{SW1 + 2}")
    a(f"s_mov_b32 s{SWP + 3}, 0x00020000")
    a(f"s_mov_b32 s47, {W1ROW}\ns_cselect_b32 s46, 1024, s47")
    piece_voff(a, 3, "s46")
    a("s_lshl_b32 s49, s46, 4")
    a(f"s_min_u32 s47, s{sW}, 6\ns_lshl_b32 s50, s47, 14\ns_add_u32 s50, s50, {L_WO}")
    a(f"s_lshr_b32 s46, s{sW}, 1\ns_and_b32 s47, s{sW}, 1")
    a(f"s_lshl_b32 s48, s46, 18\ns_lshl_b32 s51, s47, 6\ns_add_u32 s48, s48, s51\ns_and_b32 s51, s{sM}, 7\ns_lshl_b32 s51, s51, 7\ns_add_u32 s48, s48, s51")
    a(f"s_mul_i32 s51, s{sM}, 192")
    a(f"s_cmp_eq_u32 s{sW}, 5\ns_cselect_b32 s46, {16 * W1STEP}, 0\ns_add_u32 s51, s51, s46")
    a(f"s_cmp_ge_u32 s{sW}, 6\ns_cselect_b32 s46, 64, 0\ns_add_u32 s51, s51, s46")
    a(f"s_cmp_lt_u32 s{sW}, 4\ns_cselect_b32 s48, s48, s51")
    a(f"s_lshl_b32 s53, s{sW}, 11\ns_lshl_b32 s52, s{sJ}, 18\ns_add_u32 s52, s52, s53")
    if KV:
        a(f"s_add_u32 s52, s52, {KV}")
    a(f"s_lshl_b32 s51, s{sRA}, 14")
    a("s_mov_b32 s54, 0xffff\ns_mov_b32 s55, 0xffff")


def phase_a(a):
    AH = opt("ah", 2)
    a(f"s_cmp_ge_u32 s{sW}, 4")
    a("s_cbranch_scc0 .La_mfma")
    a(f"s_sub_u32 s46, s{sW}, 4")
    a("v_lshrrev_b32 v2, 3, v1\nv_lshlrev_b32 v2, 10, v2")
    a("v_lshrrev_b32 v3, 4, v1\nv_and_b32 v4, 7, v1\nv_xor_b32 v3, v3, v4\nv_lshl_add_u32 v2, v3, 4, v2")
    a("v_xor_b32 v3, 64, v2")
    a(f"v_add_u32 v4, {2 * 7168}, v2\nv_add_u32 v5, {3 * 7168}, v3\nv_add_u32 v3, {7168}, v3")
    piece_voff(a, 8, 3072)
    a(f"s_lshl_b32 s48, s{sRA}, 2\ns_add_u32 s48, s48, s46\ns_lshl_b32 s48, s48, 15")
    a(f"s_mul_i32 s49, s46, 49152\ns_lshl_b32 s47, s{sJ}, 6\ns_add_u32 s49, s49, s47")
    a(f"s_mul_i32 s50, s46, {NSL * 4096}")
    a(f"s_mul_i32 s51, s46, 3072\ns_add_u32 s51, s51, {A_W}")
    a("v_and_b32 v9, 3, v1\nv_lshlrev_b32 v9, 2, v9")
    a("s_waitcnt lgkmcnt(0)")
    vm = Cnt(a, "vmcnt", 63)

    def issue(c):
        slot = c % NSL
        a(f"s_add_u32 m0, s50, {slot * 4096}\ns_nop 0")
        for q in range(4):
            dma(a, 2 + q, SX, "s48", q * 1024)
        a(f"s_add_u32 m0, s51, {slot * 12288}\ns_add_u32 s48, s48, 128")
        for b in range(3):
            dma(a, 8, SWQ, "s49", b * 1024)
        a(f"s_add_u32 s49, s49, {64 * 3072}")
        vm.issue(c, 7)

    for c in range(AH):
        issue(c)
    stamp(a, 1)
    for c in range(8):
        vm.wait(c)
        if c == 7:
            a("s_mul_i32 s47, s2, 43\nv_add_u32 v10, s47, v1\nv_lshlrev_b32 v10, 7, v10")
            a("s_lshl_b32 s47, s2, 4\nv_add_u32 v11, s47, v1\nv_lshlrev_b32 v11, 7, v11")
            a("s_cmp_lg_u32 s46, 0\ns_cbranch_scc1 .La_notouch")
            a(f"buffer_load_dword v120, v10, {s(SW1, 4)}, 0 offen")
            a(f"buffer_load_dword v121, v10, {s(SW2, 4)}, 0 offen")
            a(f"buffer_load_dword v122, v11, {s(SWO, 4)}, 0 offen")
            a(".La_notouch:")
        if c in (0, 1, 7):
            stamp(a, {0: 2, 1: 3, 7: 4}[c])
        a("s_barrier")
        if c + AH < 8:
            issue(c + AH)
        if c + AH == 7:
            a(f"buffer_load_dword v15, v9, {s(SDBG, 4)}, 0 offen sc1")
            vm.issue(7)
    a("v_cmp_ne_u32 vcc, 0, v15\ns_cmp_eq_u64 vcc, -1\ns_cbranch_scc1 .La_cert")
    poll(a, 9, "0", SDBG)
    a(".La_cert:")
    attn_init(a)
    a(f"s_sub_u32 s46, s{sW}, 4\ns_lshl_b32 s46, s46, 10\ns_add_u32 s46, s46, {QB}\nv_add_u32 v6, s46, v2")
    a("s_barrier")
    a("s_barrier")
    a(f"ds_read_b128 {v(Q, 4)}, v6")
    a("s_branch .Lb0")

    a(".La_mfma:")
    ACC, GR, SUM, CSM, SEL = 16, 64, 80, 84, 128
    XB, WB = [96, 112], [100, 116]
    a("v_lshlrev_b32 v2, 4, v1")
    a("s_waitcnt lgkmcnt(0)")
    a("s_cmp_lg_u32 s2, 0\ns_cbranch_scc1 .La_nozero")
    for r in range(4):
        a(f"v_mov_b32 v{ACC + r}, 0")
    a(f"s_mul_i32 s46, s{sW}, 7168\ns_add_u32 s46, s46, {FL}\ns_add_u32 s47, s46, 4096")
    for p in range(7):
        a(f"buffer_store_dwordx4 {v(ACC, 4)}, v2, {s(SWS, 4)}, s{46 + (p >> 2)} offen offset:{(p & 3) * 1024} sc1")
    a(".La_nozero:")
    if opt("touch", 1):
        a("s_and_b32 s46, s2, 7\ns_lshr_b32 s47, s2, 3")
        a(f"s_cmp_eq_u32 s{sW}, 3\ns_cbranch_scc1 .La_t3")
        a("v_lshrrev_b32 v3, 2, v1\nv_mul_u32_u24 v3, 3072, v3\nv_and_b32 v4, 3, v1\nv_lshl_add_u32 v3, v4, 7, v3")
        a(f"s_mul_i32 s48, s47, 49152\ns_and_b32 s49, s46, 1\ns_lshl_b32 s49, s49, 9\ns_add_u32 s48, s48, s49\ns_lshl_b32 s49, s{sW}, 10\ns_add_u32 s48, s48, s49")
        a(f"buffer_load_dword v190, v3, {s(SWQ, 4)}, s48 offen")
        a(f"s_cmp_eq_u32 s{sW}, 2\ns_cbranch_scc1 .La_t4")
        a(f"s_lshr_b32 s48, s46, 1\ns_lshl_b32 s48, s48, 19\ns_lshl_b32 s49, s47, 14\ns_add_u32 s48, s48, s49\ns_lshl_b32 s49, s{sW}, 13\ns_add_u32 s48, s48, s49")
        a("v_lshlrev_b32 v3, 7, v1")
        a(f"buffer_load_dword v191, v3, {s(SX, 4)}, s48 offen")
        a("s_branch .La_t4")
        a(".La_t3:")
        if opt("codetouch", 1):
            a("s_getpc_b64 s[48:49]")
            a(".La_pc:")
            a("v_lshlrev_b32 v3, 7, v1")
            for p in range(3):
                a("v_min_u32 v4, .Lcode_end-.La_pc-4, v3")
                a(f"global_load_dword v{190 + p}, v4, s[48:49]")
                a("v_add_u32 v3, 8192, v3")
        if opt("pagetouch", 1):
            a("v_and_b32 v3, 7, v1\nv_lshlrev_b32 v3, 21, v3")
            a(f"buffer_load_dword v193, v3, {s(SWS, 4)}, 0 offen sc1")
            a("v_mov_b32 v3, 0")
            a(f"buffer_load_dword v194, v3, {s(SOUT, 4)}, 0 offen sc1")
        a(".La_t4:")
    a("v_and_b32 v8, 31, v1\nv_lshrrev_b32 v9, 5, v1")
    a("v_bfe_u32 v14, v1, 1, 3\nv_xor_b32 v14, v14, v9")
    a(f"s_mul_i32 s46, s{sW}, {NSL * 4096}\nv_lshlrev_b32 v15, 7, v8\nv_add_u32 v15, s46, v15")
    XA0, WA0 = 132, 136
    for st in range(4):
        a(f"v_xor_b32 v7, {2 * st}, v14\nv_lshl_add_u32 v{XA0 + st}, v7, 4, v15\nv_mov_b32 v{2 + st}, v{XA0 + st}")
    tr_addr(a, WA0, False)
    a(f"v_add_u32 v{WA0}, {A_W}, v{WA0}\nv_mov_b32 v6, v{WA0}")
    for r in range(ACC, CSM + 12):
        a(f"v_mov_b32 v{r}, 0")
    a(f"v_mov_b32 v7, {ONES:#x}\ns_mov_b32 s46, 0x10100101\ns_mov_b32 s47, 0x10100101")
    for r in range(4):
        a(f"v_cndmask_b32 v{SEL + r}, 0, v7, s[46:47]")
    a(f"v_lshlrev_b32 v137, 2, v8\nv_add_u32 v137, {A_CS}, v137")
    for b in range(3):
        a(f"ds_write_b32 v137, v{ACC} offset:{128 * b}")
    a("s_cmp_lg_u32 s2, 0\ns_cbranch_scc1 .La_nocert")
    a("s_waitcnt vmcnt(0)")
    a(f"s_lshl_b32 s46, s{sW}, 2")
    set_flag(a, "s46", SDBG)
    a(f"v_mov_b32 v6, v{WA0}")
    a(".La_nocert:")

    def rd_x(n):
        a(f"ds_read_b128 {v(XB[n & 1], 4)}, v{2 + (n & 3)}")

    def rd_w(n, b):
        for h in range(2):
            a(f"ds_read_b64_tr_b16 {v(WB[n & 1] + 4 * b + 2 * h, 2)}, v6 offset:{((n & 3) * 3 + b) * 1024 + h * 256}")

    def m16(d, B):
        a(f"v_mfma_f32_16x16x32_bf16 {v(d, 4)}, {v(SEL, 4)}, {v(B, 4)}, {v(d, 4)}")

    a("s_mov_b32 s46, 0\ns_mov_b32 s47, 0\ns_mov_b32 s48, 0")
    a("s_waitcnt lgkmcnt(0)")
    stamp(a, 1)
    a("s_barrier")
    stamp(a, 2)
    rd_x(0)
    for b in range(3):
        rd_w(0, b)
    a(".La_loop:")
    for n in range(4):
        x, w = XB[n & 1], WB[n & 1]
        a("s_waitcnt lgkmcnt(6)")
        mfma(a, GR, x, x, GR)
        if n == 3:
            a(f"s_add_u32 s47, s47, 4096\ns_add_u32 s48, s48, 12288\ns_cmp_eq_u32 s47, {NSL * 4096}")
            a("s_cselect_b32 s47, 0, s47\ns_cselect_b32 s48, 0, s48")
            for st in range(4):
                a(f"v_add_u32 v{2 + st}, s47, v{XA0 + st}")
            a(f"v_add_u32 v6, s48, v{WA0}")
            a("s_cmp_eq_u32 s46, 7\ns_cbranch_scc1 .La_nobar\ns_barrier\n.La_nobar:")
        rd_x(n + 1)
        m16(SUM, x)
        for b in range(3):
            a("s_waitcnt lgkmcnt(5)")
            if b < 2:
                mfma(a, ACC + 16 * b, w + 4 * b, x, ACC + 16 * b)
            else:
                mfma(a, ACC + 16 * b, x, w + 4 * b, ACC + 16 * b)
            rd_w(n + 1, b)
        a(f"s_cmp_lg_u32 s{sW}, {n}\ns_cbranch_scc1 .La_nocs{n}")
        for b in range(3):
            m16(CSM + 4 * b, w + 4 * b)
        a(f".La_nocs{n}:")
    a("s_add_u32 s46, s46, 1\ns_cmp_lt_u32 s46, 8\ns_cbranch_scc1 .La_loop")
    stamp(a, 3)
    T, U, TQ, UQ = 140, 141, 142, 143
    masks = [0xAAAAAAAA, 0xCCCCCCCC, 0xFF00FF00, 0xFFFF0000, 0xF0F0F0F0]
    for i, mk in enumerate(masks):
        a(f"s_mov_b32 s{46 + 2 * i}, {mk:#x}\ns_mov_b32 s{47 + 2 * i}, {mk:#x}")
    for lv in range(4):
        for r in range(8 >> lv):
            a(f"v_cndmask_b32 v{GR + r}, v{GR + 2 * r}, v{GR + 2 * r + 1}, {s(46 + 2 * lv, 2)}")
    a(f"v_mov_b32 v{GR + 1}, v{GR}")
    a(f"v_mul_f32 v{SUM}, {f32(1 / 512)}, v{SUM}")
    a("s_mov_b64 exec, 0xffffffff")
    for b in range(3):
        a(f"ds_add_f32 v137, v{CSM + 4 * b} offset:{128 * b}")
    a("s_mov_b64 exec, -1")
    a(f"v_permlane32_swap_b32 v{GR}, v{GR + 1}")
    a(f"s_lshl_b32 s46, s{sW}, 8\ns_add_u32 s46, s46, {A_ST}")
    a(f"v_cndmask_b32 v{GR}, v{GR}, v{GR + 1}, s[54:55]")
    a(f"v_mul_f32 v{GR}, {f32(1 / 512)}, v{GR}")
    a(f"v_fma_f32 v{GR}, -v{SUM}, v{SUM}, v{GR}")
    a(f"v_max_f32 v{GR}, 0, v{GR}")
    a(f"v_add_f32 v{GR}, {f32(EPS)}, v{GR}")
    a(f"v_rsq_f32 v{T}, v{GR}")
    a("s_mov_b32 s48, 0\ns_mov_b32 s49, -1")
    a(f"v_lshl_add_u32 v145, v1, 2, s46")
    a(f"v_mul_f32 v{U}, v{SUM}, v{T}")
    a(f"v_sub_f32 v{U}, 0, v{U}")
    a(f"v_cndmask_b32 v144, v{T}, v{U}, s[48:49]")
    a("ds_write_b32 v145, v144")
    a(f"v_mul_f32 v{TQ}, {f32(QS)}, v{T}\nv_mul_f32 v{UQ}, {f32(QS)}, v{U}")
    a("v_lshlrev_b32 v146, 4, v9")
    a("v_add_u32 v147, s46, v146")
    a(f"v_add_u32 v146, {A_CS}, v146")
    a("v_and_b32 v148, 0x33, v1\nv_bfe_u32 v7, v1, 2, 1\nv_lshl_or_b32 v148, v7, 3, v148\nv_bfe_u32 v7, v1, 3, 1\nv_lshl_or_b32 v148, v7, 2, v148\nv_lshlrev_b32 v148, 4, v148")
    a("v_and_b32 v149, 15, v1\nv_lshlrev_b32 v149, 4, v149\nv_lshl_add_u32 v149, v9, 8, v149\nv_bfe_u32 v7, v1, 4, 1\nv_lshl_add_u32 v149, v7, 11, v149")
    a(f"s_lshl_b32 s46, s{sW}, 12\nv_add_u32 v148, s46, v148\nv_add_u32 v149, s46, v149")
    a(f"s_lshl_b32 s46, s{sW}, 10\ns_add_u32 s46, s46, {QB}\nv_lshl_add_u32 v150, v1, 4, s46")
    a(f"s_lshl_b32 s56, s{sJ}, 18\ns_lshl_b32 s47, s{sRA}, 14\ns_add_u32 s56, s56, s47")
    if KV:
        a(f"s_add_u32 s56, s56, {KV}")
    a("s_waitcnt lgkmcnt(0)\ns_barrier")
    CK, CQ, VT, VU, CV = 96, 112, 152, 168, 151
    lg = Cnt(a, "lgkmcnt", 15)
    for g in range(4):
        a(f"ds_read_b128 {v(CK + 4 * g, 4)}, v146 offset:{128 + g * 32}")
    lg.issue("k", 4)
    a(f"ds_read_b32 v{CV}, v137 offset:256")
    for g in range(4):
        a(f"ds_read_b128 {v(VU + 4 * g, 4)}, v147 offset:{128 + g * 32}")
        a(f"ds_read_b128 {v(VT + 4 * g, 4)}, v147 offset:{g * 32}")
    lg.issue("v", 9)
    lg.wait("k")
    for g in range(4):
        a(f"ds_read_b128 {v(CQ + 4 * g, 4)}, v146 offset:{g * 32}")
    lg.issue("q", 4)
    for r in range(16):
        a(f"v_mul_f32 v{CK + r}, v{CK + r}, v{U}")
    for r in range(16):
        a(f"v_fmac_f32 v{CK + r}, v{ACC + 16 + r}, v{T}")
    for r in range(8):
        a(f"v_cvt_pk_bf16_f32 v{ACC + 16 + r}, v{CK + 2 * r}, v{CK + 2 * r + 1}")
    for hh in range(2):
        a(f"buffer_store_dwordx4 {v(ACC + 16 + 4 * hh, 4)}, v148, {s(SWS, 4)}, s56 offen offset:{2048 * hh} sc1")
    lg.wait("v")
    for r in range(16):
        a(f"v_mul_f32 v{VU + r}, v{VU + r}, v{CV}")
    for r in range(16):
        a(f"v_fmac_f32 v{VU + r}, v{ACC + 32 + r}, v{VT + r}")
    for r in range(8):
        a(f"v_cvt_pk_bf16_f32 v{ACC + 32 + r}, v{VU + 2 * r}, v{VU + 2 * r + 1}")
    for sub in range(2):
        a(f"buffer_store_dwordx4 {v(ACC + 32 + 4 * sub, 4)}, v149, {s(SWS, 4)}, s56 offen offset:{1024 + 512 * sub} sc1")
    for hh in range(2):
        a(f"ds_write_b128 v148, {v(ACC + 16 + 4 * hh, 4)} offset:{2048 * hh}")
        a(f"ds_write_b128 v149, {v(ACC + 32 + 4 * hh, 4)} offset:{1024 + 512 * hh}")
    lg.issue("w", 4)
    lg.wait("q")
    for r in range(16):
        a(f"v_mul_f32 v{CQ + r}, v{CQ + r}, v{UQ}")
    for r in range(16):
        a(f"v_fmac_f32 v{CQ + r}, v{ACC + r}, v{TQ}")
    for r in range(4, 8):
        a(f"v_cvt_pk_bf16_f32 v{Q + r}, v{CQ + 2 * r}, v{CQ + 2 * r + 1}")
    a(f"ds_write_b128 v150, {v(Q + 4, 4)}")
    for r in range(4):
        a(f"v_cvt_pk_bf16_f32 v{Q + r}, v{CQ + 2 * r}, v{CQ + 2 * r + 1}")
    a("s_waitcnt lgkmcnt(0)\ns_barrier")
    stamp(a, 4)
    attn_init(a)
    a(f"s_lshl_b32 s46, s{sRT}, 2\ns_lshr_b32 s47, s{sM}, 3\ns_lshl_b32 s47, s47, 1\ns_add_u32 s46, s46, s47\ns_and_b32 s47, s{sW}, 1\ns_add_u32 s46, s46, s47\ns_lshl_b32 s46, s46, 15")
    a(f"s_and_b32 s47, s{sM}, 7\ns_lshl_b32 s47, s47, 7\ns_add_u32 s46, s46, s47\ns_lshr_b32 s47, s{sW}, 1\ns_lshl_b32 s47, s47, 6\ns_add_u32 s57, s46, s47")
    a("v_and_b32 v85, 31, v1\nv_lshlrev_b32 v85, 10, v85\nv_lshrrev_b32 v7, 5, v1\nv_lshl_add_u32 v85, v7, 3, v85")
    a(f"s_lshl_b32 s46, s{sJ}, 8\ns_lshl_b32 s47, s{sRA}, 4\ns_add_u32 s46, s46, s47\ns_lshl_b32 s47, s{sW}, 2\ns_add_u32 s46, s46, s47\ns_add_u32 s46, s46, {FA}")
    a("s_waitcnt vmcnt(0)")
    set_flag(a, "s46")
    stamp(a, 5)
    for g in range(4):
        a(f"buffer_load_dwordx2 {v(XRES + 2 * g, 2)}, v85, {s(SX, 4)}, s57 offen offset:{16 * g}")


def phase_b(a):
    def rdK(t, off):
        a(f"ds_read_b128 {v(KB[t & 1], 4)}, v4 offset:{off}")

    def rdV(t, off):
        a("s_mov_b64 exec, s[54:55]")
        a(f"ds_read_b128 {v(VB[t & 1], 4)}, v5 offset:{off + 1024}")
        a(f"ds_read_b128 {v(VB[t & 1] + 4, 4)}, v5 offset:{off + 1536}")
        a("s_mov_b64 exec, -1")

    def qk(t, C=None):
        mfma(a, SB[t & 1], KB[t & 1], Q, C)

    def pv(t, h):
        a(f"v_smfmac_f32_32x32x32_bf16 {v(O, 16)}, {v(VB[t & 1] + 4 * h, 4)}, {v(SB[t & 1] + 8 * h, 8)}, v{IDX}")

    def ex(t, lo, hi):
        for r in range(lo, hi):
            a(f"v_exp_f32 v{SB[t & 1] + r}, v{SB[t & 1] + r}")

    def kvdma(slot):
        a("s_add_u32 s51, s51, 16384\ns_and_b32 s51, s51, 0x3ffff\ns_add_u32 s56, s51, s52")
        a(f"s_add_u32 m0, s53, {slot * 16384}\ns_nop 0")
        dma(a, 2, SWS, "s56", 0, True)
        dma(a, 2, SWS, "s56", 1024, True)

    def wdma():
        a("s_mov_b32 m0, s50\ns_add_u32 s50, s50, 1024")
        dma(a, 3, SWP, "s48")
        a("s_add_u32 s48, s48, s49")

    def start(off):
        rdK(0, off)
        rdK(1, off + 4096)
        rdV(0, off)
        a("s_waitcnt lgkmcnt(3)")
        qk(0)

    a(".Lb0:")
    start(0)
    a.nop(11)
    for t in range(4):
        a(f"s_setprio {3 - t}")
        ex(t, 0, 2)
        if t:
            pv(t - 1, 1)
        if t < 3:
            a("s_waitcnt lgkmcnt(2)")
        ex(t, 2, 6)
        if t < 3:
            qk(t + 1)
        if t < 2:
            rdK(t + 2, (t + 2) * 4096)
        ex(t, 6, 10)
        a(f"s_waitcnt lgkmcnt({1 if t < 2 else 0})")
        pv(t, 0)
        ex(t, 10, 12)
        if t < 3:
            rdV(t + 1, (t + 1) * 4096)
        ex(t, 12, 16)
    a("v_lshlrev_b32 v6, 2, v1")
    a(f"s_lshl_b32 s46, s{sJ}, 8\ns_add_u32 s46, s46, {FA}")
    pv(3, 1)
    stamp(a, 6)
    poll(a, 6, "s46")
    stamp(a, 7)
    kvdma(1)
    wdma()
    kvdma(2)
    wdma()
    for r in range(8, 16):
        a(f"v_mov_b32 v{SB[1] + r}, 0")
    a("s_mov_b32 s57, 0")
    a("s_waitcnt vmcnt(4)\ns_barrier")
    stamp(a, 8)
    start(16384)
    a.nop(11)
    a(".Lb_loop:")
    for q in range(3):
        cur, nxt = ((q + 1) % 3) * 16384, ((q + 2) % 3) * 16384

        def off(t):
            return cur + t * 4096 if t < 4 else nxt + (t - 4) * 4096

        for t in range(4):
            a(f"s_setprio {3 - t}")
            ex(t, 0, 2)
            pv(t - 1, 1)
            a("s_waitcnt lgkmcnt(2)")
            ex(t, 2, 6)
            qk(t + 1)
            if t == 2:
                a("s_waitcnt vmcnt(1)\ns_barrier")
            rdK(t + 2, off(t + 2))
            if t == 2:
                if q:
                    a(f"s_cmp_eq_u32 s57, 4\ns_cbranch_scc1 .Lb_nokv{q}")
                kvdma(q)
                if q == 1:
                    a(f".Lb_nokv{q}:")
                wdma()
                if q == 2:
                    a(f".Lb_nokv{q}:")
            ex(t, 6, 10)
            a("s_waitcnt lgkmcnt(1)")
            pv(t, 0)
            ex(t, 10, 12)
            rdV(t + 1, off(t + 1))
            ex(t, 12, 16)
    a("s_add_u32 s57, s57, 1\ns_cmp_lt_u32 s57, 5\ns_cbranch_scc1 .Lb_loop")
    pv(3, 1)
    stamp(a, 9)
    a("s_setprio 0")
    a(f"s_and_b32 s46, s{sW}, 3\ns_lshl_b32 s47, s{sRA}, 2\ns_add_u32 s46, s46, s47")
    a(f"s_lshr_b32 s47, s{sW}, 2\ns_lshl_b32 s48, s{sJ}, 1\ns_add_u32 s47, s47, s48")
    a(f"s_lshl_b32 s50, s46, 15\ns_lshl_b32 s48, s47, 10\ns_add_u32 s50, s50, s48\ns_add_u32 s50, s50, {OF}")
    a(f"s_lshl_b32 s51, s46, 7\ns_lshl_b32 s48, s47, 2\ns_add_u32 s51, s51, s48\ns_add_u32 s51, s51, {FB}")
    a(f"s_mov_b32 s46, {f32(2.0 ** -40)}\ns_mov_b32 s47, {f32(2.0 ** 40)}")
    a("s_waitcnt lgkmcnt(0)")
    a(f"v_cmp_le_f32 s[48:49], s46, v{O + 8}")
    a(f"v_cmp_ge_f32 vcc, s47, v{O + 8}")
    a(f"v_add_f32 v7, |v{O}|, |v{O + 1}|")
    for r in range(2, 8):
        a(f"v_add_f32 v7, v7, |v{O + r}|")
    a("s_and_b64 s[48:49], s[48:49], vcc")
    a(f"s_mov_b32 s46, {f32(2.0 ** 126)}")
    a("v_cmp_ge_f32 vcc, s46, v7")
    a(f"v_rcp_f32 v6, v{O + 8}")
    a("s_and_b64 s[48:49], s[48:49], vcc")
    a("s_cmp_eq_u64 s[48:49], -1")
    a("s_cbranch_scc0 .Lb_slow")
    a(".Lb_out:")
    for r in range(8):
        a(f"v_mul_f32 v{O + r}, v{O + r}, v6")
    for r in range(4):
        a(f"v_cvt_pk_bf16_f32 v{O + r}, v{O + 2 * r}, v{O + 2 * r + 1}")
    a(f"buffer_store_dwordx4 {v(O, 4)}, v2, {s(SWS, 4)}, s50 offen sc1")


def phase_b_slow(a):
    a(".Lb_slow:")
    a(f"s_lshl_b32 s46, s{sJ}, 18")
    if KV:
        a(f"s_add_u32 s46, s46, {KV}")
    a("s_mov_b32 s47, s46\ns_mov_b32 s48, 0\nv_mov_b32 v6, 0xff800000")
    a(".Lb_max:")
    a(f"buffer_load_dwordx4 {v(KB[0], 4)}, v4, {s(SWS, 4)}, s47 offen sc1")
    a("s_add_u32 s47, s47, 4096\ns_waitcnt vmcnt(0)")
    mfma(a, SB[0], KB[0], Q, None)
    a.nop(12)
    for r in range(0, 16, 2):
        a(f"v_max3_f32 v6, v6, v{SB[0] + r}, v{SB[0] + r + 1}")
    a("s_add_u32 s48, s48, 1\ns_cmp_lt_u32 s48, 64\ns_cbranch_scc1 .Lb_max")
    a("v_mov_b32 v7, v6")
    a.nop(2)
    a("v_permlane32_swap_b32 v6, v7")
    a.nop(1)
    a("v_max_f32 v6, v6, v7")
    for r in range(16):
        a(f"v_sub_f32 v{CB + r}, 0, v6\nv_mov_b32 v{O + r}, 0")
    a("s_mov_b32 s48, 0")
    a(".Lb_redo:")
    a(f"buffer_load_dwordx4 {v(KB[0], 4)}, v4, {s(SWS, 4)}, s46 offen sc1")
    a("s_mov_b64 exec, s[54:55]")
    for h in range(2):
        a(f"buffer_load_dwordx4 {v(VB[0] + 4 * h, 4)}, v5, {s(SWS, 4)}, s46 offen offset:{1024 + 512 * h} sc1")
    a("s_mov_b64 exec, -1")
    a("s_add_u32 s46, s46, 4096\ns_waitcnt vmcnt(0)")
    mfma(a, SB[0], KB[0], Q, CB)
    a.nop(12)
    for r in range(16):
        a(f"v_exp_f32 v{SB[0] + r}, v{SB[0] + r}")
    a.nop(2)
    for h in range(2):
        a(f"v_smfmac_f32_32x32x32_bf16 {v(O, 16)}, {v(VB[0] + 4 * h, 4)}, {v(SB[0] + 8 * h, 8)}, v{IDX}")
    a.nop(8)
    a("s_add_u32 s48, s48, 1\ns_cmp_lt_u32 s48, 64\ns_cbranch_scc1 .Lb_redo")
    a.nop(4)
    a(f"v_rcp_f32 v6, v{O + 8}")
    a("s_nop 0\ns_branch .Lb_out")


KEEP, SEND = 16, 32


def exchange(a, pre_barrier):
    a(f"s_lshl_b32 s46, s{sW}, 12\ns_add_u32 s47, s46, {L_PART}\nv_add_u32 v8, s47, v2")
    a(f"s_xor_b32 s46, s46, 8192\ns_add_u32 s46, s46, {L_PART}\nv_add_u32 v9, s46, v2")
    if pre_barrier:
        a("s_barrier")
    a.nop(5)
    for g in range(4):
        a(f"ds_write_b128 v8, {v(SEND + 4 * g, 4)} offset:{g * 1024}")
    a("s_waitcnt lgkmcnt(0)\ns_barrier")
    for g in range(4):
        a(f"ds_read_b128 {v(SEND + 4 * g, 4)}, v9 offset:{g * 1024}")
    for g in range(4):
        a(f"s_waitcnt lgkmcnt({3 - g})")
        for r in range(4):
            a(f"v_add_f32 v{KEEP + 4 * g + r}, v{KEEP + 4 * g + r}, v{SEND + 4 * g + r}")


def w2_src(a, dst, wreg):
    a(f"s_lshr_b32 s46, {wreg}, 1\ns_mul_i32 s{dst}, s46, {43 * 16384}\ns_and_b32 s46, {wreg}, 1\ns_lshl_b32 s46, s46, 6\ns_add_u32 s{dst}, s{dst}, s46")
    a(f"s_and_b32 s46, s{sM}, 7\ns_lshl_b32 s46, s46, 7\ns_add_u32 s{dst}, s{dst}, s46")


def phase_ce(a):
    W, FR = 48, 176
    DC, DE = opt("dc", 10), opt("de", 12)
    piece_voff(a, 3, W1ROW)
    tr_addr(a, 10, True)
    a(f"s_lshr_b32 s57, s{sW}, 1")
    a(f"s_mul_i32 s46, s57, {48 * K}\ns_add_u32 s46, s46, {L_WO}\nv_add_u32 v4, s46, v10")
    a(f"s_lshl_b32 s46, s57, 14\ns_add_u32 s46, s46, {L_WO + 16 * K}\nv_add_u32 v5, s46, v10")
    a(f"s_mul_i32 s48, s{sM}, 192\ns_mul_i32 s46, s{sW}, {W1STEP}\ns_add_u32 s48, s48, s46")
    a(f"s_add_u32 s49, s48, 128\ns_add_u32 s48, s48, {64 + 16 * W1STEP}\ns_lshl_b32 s50, s{sW}, 10")
    a(f"s_lshl_b32 s56, s{sRT}, 2\ns_lshr_b32 s47, s{sM}, 3\ns_lshl_b32 s47, s47, 1\ns_add_u32 s56, s56, s47\ns_and_b32 s47, s{sW}, 1\ns_add_u32 s56, s56, s47")
    a("s_waitcnt vmcnt(0)")
    set_flag(a, "s51")
    a("s_barrier")
    stamp(a, 10)
    a("s_setprio 2")
    for p in range(16):
        if p < 12:
            reg = 48 if p < 4 else 49
            a(f"s_add_u32 m0, s50, {p * 4096}\ns_nop 0")
            dma(a, 3, SW1, f"s{reg}")
            a(f"s_add_u32 s{reg}, s{reg}, {4 * W1STEP}")
        for b in range(2):
            for h in range(2):
                a(f"ds_read_b64_tr_b16 {v(W + 8 * p + 4 * b + 2 * h, 2)}, v{4 + b} offset:{p * 1024 + h * 512}")
        if p < 8:
            a(f"v_lshlrev_b32 v{KEEP + 2 * p}, 16, v{XRES + p}\nv_and_b32 v{KEEP + 2 * p + 1}, 0xffff0000, v{XRES + p}")
    a("v_and_b32 v6, 15, v1\nv_lshlrev_b32 v6, 2, v6")
    a(f"s_lshl_b32 s46, s56, 7\ns_lshl_b32 s47, s57, 6\ns_add_u32 s46, s46, s47\ns_add_u32 s46, s46, {FB}")
    a(f"s_lshl_b32 s48, s56, 15\ns_lshl_b32 s47, s57, 14\ns_add_u32 s48, s48, s47\ns_add_u32 s48, s48, {OF}")
    a("s_waitcnt lgkmcnt(0)\ns_barrier")
    poll(a, 6, "s46")
    stamp(a, 11)
    vm = Cnt(a, "vmcnt", 63)

    def ld(k, reg):
        a(f"buffer_load_dwordx4 {v(reg, 4)}, v2, {s(SWS, 4)}, s48 offen offset:{(k & 3) * 1024} sc1")
        if (k & 3) == 3:
            a("s_add_u32 s48, s48, 4096")
        vm.issue(k)

    for k in range(DC):
        ld(k, FR + 4 * k)
    for k in range(16):
        vm.wait(k)
        mfma(a, SEND, W + 8 * k + 4, FR + 4 * k, SEND if k else None)
        mfma(a, KEEP, W + 8 * k, FR + 4 * k, KEEP)
        if k + DC < 16:
            ld(k + DC, FR + 4 * (k + DC))
    stamp(a, 12)
    exchange(a, False)
    stamp(a, 13)
    HB = 48
    for p in range(8):
        a(f"v_cvt_pk_bf16_f32 v{HB + p}, v{KEEP + 2 * p}, v{KEEP + 2 * p + 1}")
    a(f"s_and_b32 s47, s{sM}, 7\ns_lshl_b32 s47, s47, 1\ns_add_u32 s47, s47, s57")
    a(f"s_lshl_b32 s46, s56, 15\ns_lshl_b32 s48, s47, 11\ns_add_u32 s46, s46, s48\ns_add_u32 s46, s46, {HF}")
    for k in range(2):
        a(f"buffer_store_dwordx4 {v(HB + 4 * k, 4)}, v2, {s(SWS, 4)}, s46 offen offset:{1024 * k} sc1")
    a(f"v_add_f32 v56, v{KEEP}, v{KEEP + 1}\nv_mul_f32 v57, v{KEEP}, v{KEEP}\nv_add_f32 v58, v{KEEP + 2}, v{KEEP + 3}\nv_mul_f32 v59, v{KEEP + 1}, v{KEEP + 1}")
    for r in range(2, 16):
        if r >= 4:
            a(f"v_add_f32 v{56 + 2 * (r & 1)}, v{56 + 2 * (r & 1)}, v{KEEP + r}")
        a(f"v_fmac_f32 v{57 + 2 * (r & 1)}, v{KEEP + r}, v{KEEP + r}")
    a("v_add_f32 v56, v56, v58\nv_add_f32 v57, v57, v59")
    a(f"s_lshl_b32 s46, s56, 12\ns_lshl_b32 s48, s47, 8\ns_add_u32 s46, s46, s48\ns_add_u32 s46, s46, {ST}")
    a("v_permlane32_swap_b32 v56, v57")
    a("v_lshlrev_b32 v8, 2, v1")
    a("v_add_f32 v56, v56, v57")
    a(f"buffer_store_dword v56, v8, {s(SWS, 4)}, s46 offen sc1")
    a(f"s_lshl_b32 s46, s56, 7\ns_lshl_b32 s48, s47, 2\ns_add_u32 s51, s46, s48\ns_add_u32 s51, s51, {FC}")
    piece_voff(a, 3, 1024)
    w2_src(a, 48, f"s{sW}")
    a(f"s_add_u32 s48, s48, {12 * 16384}")
    a(f"s_mul_i32 s46, s57, 3072\nv_add_u32 v4, s46, v10\ns_lshl_b32 s46, s57, 10\ns_add_u32 s46, s46, 1024\nv_add_u32 v5, s46, v10")
    a(f"v_add_u32 v11, {64 * K}, v4\nv_add_u32 v12, {64 * K}, v5\nv_add_u32 v13, {128 * K}, v4\nv_add_u32 v14, {128 * K}, v5")
    a("s_waitcnt vmcnt(0)")
    set_flag(a, "s51")
    stamp(a, 14)
    a("s_setprio 0")

    def w2_batch(n0, n1):
        for n in range(n0, n1):
            a(f"s_add_u32 m0, s50, {w2_addr(n)}\ns_nop 0")
            dma(a, 3, SW2, "s48")
            a("s_add_u32 s48, s48, 16384")

    AK, AS = [4, 11, 13], [5, 12, 14]

    def rd_w(n, reg):
        ad = w2_addr(n)
        for b in range(2):
            for h in range(2):
                a(f"ds_read_b64_tr_b16 {v(reg + 4 * b + 2 * h, 2)}, v{(AK, AS)[b][ad >> 16]} offset:{(ad & 65535) + h * 512}")

    WP, WB, FR = 48, [72, 80], 88
    a("s_barrier")
    w2_batch(12, 32)
    for n in range(3):
        rd_w(n, WP + 8 * n)
    a("s_waitcnt lgkmcnt(0)\ns_barrier")
    w2_batch(32, 43)
    a("v_and_b32 v6, 7, v1\nv_lshlrev_b32 v6, 2, v6")
    a(f"s_lshl_b32 s46, s56, 7\ns_mul_i32 s47, s57, 28\ns_add_u32 s46, s46, s47\ns_add_u32 s46, s46, {FD}")
    a(f"s_mul_i32 s48, s56, {86 * K}\ns_mul_i32 s47, s57, {43 * K}\ns_add_u32 s48, s48, s47\ns_add_u32 s48, s48, {FF}")
    a("s_waitcnt vmcnt(0)\ns_barrier")
    stamp(a, 15)
    a("s_setprio 2")
    rd_w(3, WB[1])
    poll(a, 6, "s46")
    stamp(a, 16)
    NW = DE + 1
    for k in range(DE):
        ld(k, FR + 4 * (k % NW))
    for n in range(43):
        w = WP + 8 * n if n < 3 else WB[n & 1]
        if 3 <= n < 42:
            rd_w(n + 1, WB[(n + 1) & 1])
        left = vm.left(n)
        vm.q = vm.q[len(vm.q) - left:] if left else []
        lgk = "" if n < 3 else f" lgkmcnt({4 if n < 42 else 0})"
        a(f"s_waitcnt vmcnt({left}){lgk}")
        mfma(a, SEND, w + 4, FR + 4 * (n % NW), SEND if n else None)
        mfma(a, KEEP, w, FR + 4 * (n % NW), KEEP)
        if n + DE < 43:
            ld(n + DE, FR + 4 * ((n + DE) % NW))
    stamp(a, 17)
    exchange(a, True)
    a("v_and_b32 v8, 31, v1\nv_lshrrev_b32 v9, 5, v1\nv_lshlrev_b32 v8, 10, v8\nv_lshl_add_u32 v8, v9, 4, v8")
    a(f"s_lshl_b32 s46, s56, 15\ns_and_b32 s47, s{sM}, 7\ns_lshl_b32 s47, s47, 7\ns_add_u32 s46, s46, s47\ns_lshl_b32 s47, s57, 6\ns_add_u32 s46, s46, s47")
    for p in range(8):
        a(f"v_cvt_pk_bf16_f32 v{KEEP + p}, v{KEEP + 2 * p}, v{KEEP + 2 * p + 1}")
    a.nop(2)
    for k in range(2):
        a(f"v_permlane32_swap_b32 v{KEEP + 4 * k}, v{KEEP + 2 + 4 * k}")
        a(f"v_permlane32_swap_b32 v{KEEP + 1 + 4 * k}, v{KEEP + 3 + 4 * k}")
    for k in range(2):
        a(f"buffer_store_dwordx4 {v(KEEP + 4 * k, 4)}, v8, {s(SOUT, 4)}, s46 offen offset:{32 * k}")
    stamp(a, 18)
    stamp_flush(a)
    a("s_endpgm")


def phase_d(a):
    WB, ACC, CS, FR = 12, 28, 76, 124
    NM, NL, IRS = 252, 253, 254
    DD = opt("dd", 12)
    ON = ACC
    a(".Ld:")
    a("s_nop 0")
    for r in range(48):
        a(f"v_mov_b32 v{CS + r}, 0")
    for r in range(4):
        a(f"v_mov_b32 v{ON + r}, {ONES:#x}")
    tr_addr(a, 4, True)
    a(f"v_add_u32 v5, {112 * K}, v4\nv_mov_b32 v8, v5")
    piece_voff(a, 3, 1024)
    a(f"s_sub_u32 s57, s{sW}, 4")
    w2_src(a, 48, "s57")
    a(f"s_lshl_b32 s50, s57, 10\ns_add_u32 s50, s50, {w2_addr(0)}")
    a(f"s_lshl_b32 s56, s{sRT}, 2\ns_add_u32 s56, s56, s57")
    a("s_waitcnt vmcnt(0)")
    set_flag(a, "s51")
    a("s_barrier")
    stamp(a, 10)

    def cs_rd(i, off):
        for h in range(2):
            a(f"ds_read_b64_tr_b16 {v(WB + 4 * i + 2 * h, 2)}, v8 offset:{off + h * 512}")

    def cs_loop(b, iters, with_dma):
        lab = a.label("cs")
        a(f"s_mov_b32 s46, {iters}")
        a(f"{lab}:")
        for i in range(4):
            a("s_waitcnt lgkmcnt(4)")
            mfma(a, CS + 16 * b, WB + 4 * i, ON, CS + 16 * b)
            cs_rd((i + 3) & 3, (i + 3) * 1024)
            if with_dma and i == 1:
                a("s_mov_b32 m0, s50\ns_add_u32 s50, s50, 4096")
                dma(a, 3, SW2, "s48")
                a("s_add_u32 s48, s48, 16384")
        a("v_add_u32 v8, 4096, v8")
        a(f"s_sub_u32 s46, s46, 1\ns_cmp_lg_u32 s46, 0\ns_cbranch_scc1 {lab}")

    for i in range(3):
        cs_rd(i, i * 1024)
    cs_loop(0, 8, False)
    a("s_barrier")
    cs_loop(1, 4, False)
    a("v_mov_b32 v8, v4")
    a("s_waitcnt lgkmcnt(0)")
    stamp(a, 11)
    a("s_barrier")
    for i in range(3):
        cs_rd(i, i * 1024)
    cs_loop(1, 4, True)
    cs_loop(2, 8, True)
    a("v_and_b32 v6, 15, v1\nv_lshlrev_b32 v6, 2, v6\nv_lshlrev_b32 v9, 2, v1")
    a(f"s_lshl_b32 s46, s56, 7\ns_add_u32 s46, s46, {FC}")
    a(f"s_lshl_b32 s48, s56, 15\ns_add_u32 s48, s48, {HF}")
    a(f"s_lshl_b32 s49, s56, 12\ns_add_u32 s49, s49, {ST}")
    a(f"s_mul_i32 s50, s56, {86 * K}\ns_mul_i32 s47, s{sM}, 6144\ns_add_u32 s50, s50, s47\ns_add_u32 s50, s50, {FF}")
    a(f"s_lshl_b32 s51, s56, 7\ns_lshl_b32 s47, s{sM}, 2\ns_add_u32 s51, s51, s47\ns_add_u32 s51, s51, {FD}")
    a("s_waitcnt lgkmcnt(0)")
    a(f"s_cmp_eq_u32 s{sM}, 15\ns_cbranch_scc1 .Ld_idle")
    lg = Cnt(a, "lgkmcnt", 15)
    vm = Cnt(a, "vmcnt", 63)

    def rd_w(b, k, reg):
        ad = w1_addr(32 * b + k)
        base, off = (5, ad - 112 * K) if ad >= 112 * K else (4, ad)
        for h in range(2):
            a(f"ds_read_b64_tr_b16 {v(reg + 2 * h, 2)}, v{base} offset:{off + h * 512}")
        lg.issue((b, k), 2)

    def ld(k):
        a(f"buffer_load_dwordx4 {v(FR + 4 * k, 4)}, v2, {s(SWS, 4)}, s48 offen offset:{(k & 3) * 1024} sc1")
        if (k & 3) == 3:
            a("s_add_u32 s48, s48, 4096")
        vm.issue(k)

    for b in range(2):
        rd_w(b, 0, WB + 4 * b)
    stamp(a, 12)
    a("s_setprio 2")
    poll(a, 6, "s46")
    stamp(a, 13)
    for k in range(DD):
        ld(k)
    SP = ACC + 32
    nst = 0
    P2 = lambda k: WB + 4 * (k & 3)
    for n in range(32):
        buf = WB + 8 * (n & 1)
        if n < 31:
            for b in range(2):
                rd_w(b, n + 1, WB + 8 * ((n + 1) & 1) + 4 * b)
        vm.wait(n)
        lg.wait((0, n))
        mfma(a, ACC, buf, FR + 4 * n, ACC if n else None)
        if n == 31:
            rd_w(2, 0, P2(0))
            rd_w(2, 1, P2(1))
        lg.wait((1, n))
        mfma(a, ACC + 16, buf + 4, FR + 4 * n, ACC + 16 if n else None)
        if n + DD < 32:
            ld(n + DD)
        elif nst < 16:
            for _ in range(4):
                a(f"buffer_load_dword v{SP + nst}, v9, {s(SWS, 4)}, s49 offen offset:{256 * nst} sc1")
                vm.issue("st")
                nst += 1
        if n == 29:
            vm.wait("st")
            for w_ in (8, 4, 2, 1):
                for r in range(w_):
                    a(f"v_add_f32 v{SP + r}, v{SP + r}, v{SP + r + w_}")
            a(f"v_mov_b32 v{SP + 1}, v{SP}")
        if n == 30:
            a(f"v_permlane32_swap_b32 v{SP}, v{SP + 1}")
            a("s_nop 0")
            a(f"v_mul_f32 v{NM}, {f32(-1 / 512)}, v{SP}")
            a(f"v_mul_f32 v{IRS}, {f32(1 / 512)}, v{SP + 1}")
            a(f"v_fma_f32 v{IRS}, -v{NM}, v{NM}, v{IRS}")
            a(f"v_max_f32 v{IRS}, 0, v{IRS}")
            a(f"v_add_f32 v{IRS}, {f32(EPS)}, v{IRS}")
            a(f"v_rsq_f32 v{NL}, v{IRS}")
            a(f"v_sqrt_f32 v{IRS}, v{IRS}")
            for r in range(16):
                a(f"v_mul_f32 v{ACC + 32 + r}, v{CS + 32 + r}, v{NM}")
            a(f"v_mul_f32 v{NL}, {f32(-LOG2E)}, v{NL}")
    assert nst == 16
    stamp(a, 14)
    a("s_barrier")

    def silu_ops(A, C, with_mean):
        ops = []
        if with_mean:
            ops.append(f"v_fmac_f32 v{A}, v{C}, v{NM}")
        ops += [f"v_mul_f32 v{C}, v{A}, v{NL}", f"v_exp_f32 v{C}, v{C}", f"v_fma_f32 v{C}, v{C}, v{IRS}, v{IRS}",
                f"v_rcp_f32 v{C}, v{C}", f"v_mul_f32 v{C}, v{A}, v{C}"]
        return ops

    def store(b, k):
        lab = None
        if b:
            lab = a.label("nost")
            a(f"s_cmp_eq_u32 s{sM}, 14\ns_cbranch_scc1 {lab}")
        off = (2 * b + k) * 1024
        sreg = "s50" if off < 4096 else "s47"
        a(f"buffer_store_dwordx4 {v(ACC + 16 * b + 4 * k, 4)}, v2, {s(SWS, 4)}, {sreg} offen offset:{off & 4095} sc1")
        if lab:
            a(f"{lab}:")

    a("s_add_u32 s47, s50, 4096")
    ch = [silu_ops(ACC + i, CS + i, True) for i in range(32)]
    for n in range(36):
        if n < 32:
            if n + 2 < 32:
                rd_w(2, n + 2, P2(n + 2))
            lg.wait((2, n))
            mfma(a, ACC + 32, P2(n), FR + 4 * n, ACC + 32)
        else:
            assert not lg.q
        if n == 32:
            stamp(a, 15)
        i = n - 1
        if 0 <= i < 32:
            for op in ch[i][0:3]:
                a(op)
        if 0 <= i - 2 < 32:
            if i >= 33:
                a("s_nop 0")
            a(ch[i - 2][5])
        if 0 <= i - 1 < 32:
            for op in ch[i - 1][3:5]:
                a(op)
        d = i - 2
        if d >= 1 and d & 1:
            b, r = d >> 4, (d & 15) >> 1
            a(f"v_cvt_pk_bf16_f32 v{ACC + 16 * b + r}, v{CS + d - 1}, v{CS + d}")
            if (r & 3) == 3:
                store(b, r >> 2)
    ch = [silu_ops(ACC + 32 + i, CS + 32 + i, False) for i in range(16)]
    for st in range(5):
        for i in range(16):
            a(ch[i][st])
    for r in range(8):
        a(f"v_cvt_pk_bf16_f32 v{ACC + 32 + r}, v{CS + 32 + 2 * r}, v{CS + 32 + 2 * r + 1}")
        if (r & 3) == 3:
            store(2, r >> 2)
    a("s_barrier")
    stamp(a, 16)
    a("s_waitcnt vmcnt(0)")
    set_flag(a, "s51")
    stamp(a, 17)
    a(".Ld_tail:")
    a("s_barrier\ns_barrier\ns_barrier")
    stamp_flush(a)
    a("s_endpgm")
    a(".Ld_idle:")
    a("s_waitcnt vmcnt(0)\ns_barrier\ns_barrier\ns_branch .Ld_tail")


def build():
    hdr = open(os.path.join(os.path.dirname(os.path.abspath(__file__)), "header.txt")).read()
    a = Asm()
    name = NAME + "_kernel"
    a('.amdgcn_target "amdgcn-amd-amdhsa--gfx950"\n.text')
    a(f".globl {name}\n.p2align 8\n.type {name},@function")
    a(f"{name}:")
    a("s_cmp_ge_u32 s2, 256\ns_cbranch_scc1 .Lend")
    if STAMP:
        for i in range(NST):
            a(f"s_mov_b64 {s(SST + 2 * i, 2)}, 0")
    stamp(a, 0)
    for d, off, nb in ((SX, 0, X_BYTES), (SWQ, 8, 512 * 3072), (SWS, 64, WS_USED), (SWO, 16, 512 * 1024), (SW1, 32, 512 * W1ROW),
                       (SW2, 40, 1376 * 1024), (SOUT, 48, X_BYTES), (SDBG, 56, 256)):
        a(f"s_load_dwordx2 {s(d, 2)}, s[0:1], {off}")
        a(f"s_mov_b32 s{d + 2}, {nb}\ns_mov_b32 s{d + 3}, 0x00020000")
    if opt("scramble", 0):
        a("s_lshr_b32 s46, s2, 5\ns_and_b32 s47, s2, 31\ns_lshl_b32 s47, s47, 3\ns_or_b32 s2, s46, s47")
    a("v_lshrrev_b32 v2, 6, v0\nv_and_b32 v1, 63, v0")
    a(f"v_readfirstlane_b32 s{sW}, v2")
    a("s_and_b32 s46, s2, 7\ns_lshr_b32 s47, s2, 3")
    a(f"s_lshr_b32 s{sRA}, s46, 1\ns_lshl_b32 s{sRA}, s{sRA}, 2\ns_lshr_b32 s48, s47, 3\ns_add_u32 s{sRA}, s{sRA}, s48")
    a(f"s_and_b32 s{sJ}, s46, 1\ns_lshl_b32 s{sJ}, s{sJ}, 3\ns_and_b32 s48, s47, 7\ns_add_u32 s{sJ}, s{sJ}, s48")
    a(f"s_lshl_b32 s{sRT}, s46, 1\ns_lshr_b32 s48, s47, 4\ns_add_u32 s{sRT}, s{sRT}, s48\ns_and_b32 s{sM}, s47, 15")
    a(f"s_mov_b32 s{sBUD}, 0x8000")
    phase_a(a)
    phase_b(a)
    a(f"s_cmp_ge_u32 s{sW}, 4\ns_cbranch_scc1 .Ld")
    phase_ce(a)
    phase_d(a)
    phase_b_slow(a)
    a(".Lend:\ns_endpgm\n.Lcode_end:")
    a('.section .rodata,"a"')
    a(f""".p2align 6
.amdhsa_kernel {name}
.amdhsa_next_free_vgpr 256
.amdhsa_next_free_sgpr 102
.amdhsa_accum_offset 256
.amdhsa_group_segment_fixed_size 0
.amdhsa_kernarg_size 72
.amdhsa_user_sgpr_count 2
.amdhsa_user_sgpr_kernarg_segment_ptr 1
.amdhsa_system_sgpr_workgroup_id_x 1
.amdhsa_float_denorm_mode_32 3
.end_amdhsa_kernel""")
    hdr += f"; @launch grid=(256,1,1) block=(512,1,1) lds={LDS}\n"
    return hdr + a.text()


if __name__ == "__main__":
    txt = build()
    probs = check(txt)
    for p in probs:
        print("HAZARD", p)
    open(sys.argv[1], "w").write(txt)
    print("wrote", sys.argv[1], len(txt), "bytes;", len(probs), "hazards")
```

```python
import sys, os
sys.path.insert(0, os.path.dirname(os.path.abspath(__file__)))
from asmlib import Asm, v, s, check

ONES = 0x3F803F80
MB = 1 << 20


def kernel(a, name, idx, sched, nwaves=8, streams=1, prio=None, unroll=4, cz=False, pre="", zrows=False, swapqk=False, span=32768, wgmask=15):
    a(f".globl {name}\n.p2align 8\n.type {name},@function\n{name}:")
    a(f"s_cmp_ge_u32 s2, 256\ns_cbranch_scc1 .Lend_{name}")
    a("s_load_dwordx2 s[4:5], s[0:1], 64\ns_mov_b32 s6, 0x2000000\ns_mov_b32 s7, 0x00020000")
    a("v_lshrrev_b32 v2, 6, v0\nv_and_b32 v1, 63, v0\nv_readfirstlane_b32 s16, v2")
    a("v_lshlrev_b32 v2, 4, v1")
    a("s_lshl_b32 s22, s16, 10\ns_mov_b32 s23, s22\ns_lshl_b32 s19, s16, 11\ns_add_u32 s19, s19, 0x100000")
    a("s_waitcnt lgkmcnt(0)")
    KB, VB, IDX = [12, 16], [20, 28], 6
    Q = [8, 100]
    SB = [[36, 52], [104, 120]]
    O = [68, 136]
    CB = 84
    for st in range(streams):
        a(f"buffer_load_dwordx4 {v(Q[st], 4)}, v2, s[4:7], s19 offen offset:{1024 * st}")
    for n in range(128 // nwaves):
        a(f"s_add_u32 m0, s22, {n * 1024 * nwaves}\ns_nop 0")
        a(f"buffer_load_dwordx4 v2, s[4:7], s23 offen lds")
        a(f"s_add_u32 s23, s23, {1024 * nwaves}")
    a("v_and_b32 v3, 15, v1\nv_lshlrev_b32 v3, 4, v3\nv_lshrrev_b32 v4, 5, v1\nv_lshl_add_u32 v3, v4, 8, v3")
    a("s_mov_b32 s20, 0xffff\ns_mov_b32 s21, 0xffff")
    a(f"v_mov_b32 v{IDX}, 0xdddddddd")
    for r in range(16):
        a(f"v_mov_b32 v{VB[0] + r}, {ONES:#x}")
        a(f"v_mov_b32 v{CB + r}, 0")
        for st in range(streams):
            a(f"v_mov_b32 v{O[st] + r}, 0\nv_mov_b32 v{SB[st][0] + r}, 0\nv_mov_b32 v{SB[st][1] + r}, 0")
    if zrows:
        a("s_mov_b32 s26, 0xfffe0000\ns_mov_b32 s27, 0xfffe0000\ns_mov_b64 exec, s[26:27]")
        for r in range(16):
            a(f"v_mov_b32 v{VB[0] + r}, 0")
        a("s_mov_b64 exec, -1")
    a("s_waitcnt vmcnt(0)\ns_barrier")
    if pre:
        a(pre.replace("NAME", name))
    ool = []
    a("v_mov_b32 v148, 0\ns_lshl_b32 s35, s16, 2\ns_add_u32 s35, s35, 0x23800\nv_mov_b32 v149, s35")
    a("v_and_b32 v151, 7, v1\nv_lshlrev_b32 v151, 2, v151\nv_add_u32 v151, 0x23800, v151\nds_write_b32 v149, v148\ns_mov_b32 s35, 0x4000")
    a("s_waitcnt lgkmcnt(0)\ns_barrier")
    a(f"s_mov_b32 s30, 0\ns_mov_b32 s31, {span - 1}\ns_and_b32 s33, s2, {wgmask}\ns_lshl_b32 s33, s33, 3\ns_add_u32 s33, s33, s16\ns_mul_i32 s33, s33, {span}")
    a("s_lshl_b32 s34, s16, 10\ns_add_u32 s34, s34, 0x21000")
    a("s_mov_b32 s8, s4\ns_or_b32 s9, s5, 0x100000\ns_mov_b32 s10, 0x2000000\ns_mov_b32 s11, 0x00820000")
    a("s_memrealtime s[40:41]\ns_memtime s[42:43]")

    def rdK(t, off):
        a(f"ds_read_b128 {v(KB[t & 1], 4)}, v4 offset:{off}")

    def rdV(t, off, ex=True):
        if ex:
            a("s_mov_b64 exec, s[20:21]")
        a(f"ds_read_b128 {v(VB[t & 1], 4)}, v5 offset:{off + 1024}")
        a(f"ds_read_b128 {v(VB[t & 1] + 4, 4)}, v5 offset:{off + 1536}")
        if ex:
            a("s_mov_b64 exec, -1")

    a("v_mov_b32 v4, v2\nv_mov_b32 v5, v3")
    rdK(0, 0)
    rdK(1, 2048)
    rdV(0, 0)
    a("s_mov_b32 s25, 0")
    a("s_waitcnt lgkmcnt(0)")
    a(f".Lloop_{name}:")
    for t in range(unroll):
        pos = [0] * streams
        st = 0
        for tok in sched.split():
            if "@" in tok:
                tok, tm = tok.split("@")
                hi_only = tm.endswith("h")
                lo_only = tm.endswith("l")
                tm = tm.rstrip("hl")
                if str(t & 3) not in tm:
                    continue
                if hi_only or lo_only:
                    lab = a.label("sk")
                    a(f"s_cmp_ge_u32 s16, 4\ns_cbranch_scc{0 if hi_only else 1} {lab}")
                    for _ in range(int(tok[1:] or 1)):
                        a("s_add_u32 s30, s30, 1024\ns_and_b32 s30, s30, s31\ns_add_u32 s32, s30, s33\ns_mov_b32 m0, s34\ns_nop 0")
                        a(f"buffer_load_dwordx4 v2, s[4:7], s32 offen sc1 lds")
                    a(f"{lab}:")
                    continue
            if tok[0] == "G":
                for _ in range(int(tok[1:] or 1)):
                    a("s_add_u32 s30, s30, 1024\ns_and_b32 s30, s30, s31\ns_add_u32 s32, s30, s33\ns_mov_b32 m0, s34\ns_nop 0")
                    a(f"buffer_load_dwordx4 v2, s[4:7], s32 offen sc1 lds")
            elif tok[0] == "T":
                for _ in range(int(tok[1:] or 1)):
                    a("s_add_u32 s30, s30, 1024\ns_and_b32 s30, s30, s31\ns_add_u32 s32, s30, s33\ns_mov_b32 m0, s34\ns_nop 0")
                    a(f"buffer_load_dwordx4 off, s[8:11], s32 sc1 lds")
            elif tok[0] == "R":
                for _ in range(int(tok[1:] or 1)):
                    a("s_add_u32 s30, s30, 1024\ns_and_b32 s30, s30, s31\ns_add_u32 s32, s30, s33")
                    a(f"buffer_load_dwordx4 v[144:147], v2, s[4:7], s32 offen sc1")
            elif tok == "A":
                a("v_add_u32 v148, 1, v148\ns_mov_b64 exec, 1\nds_write_b32 v149, v148\ns_mov_b64 exec, -1")
            elif tok == "Cr":
                a("ds_read_b32 v150, v151")
            elif tok[0:2] == "Cc":
                lab = a.label("ck")
                a(f"s_waitcnt lgkmcnt({tok[2:]})\nv_cmp_le_u32 vcc, v148, v150\ns_cmp_eq_u64 vcc, -1\ns_cbranch_scc0 {lab}_s\n{lab}_b:")
                ool.append(f"{lab}_s:\nds_read_b32 v150, v151\ns_sub_u32 s35, s35, 1\ns_cbranch_scc1 {lab}_b\ns_waitcnt lgkmcnt(0)\nv_cmp_le_u32 vcc, v148, v150\ns_cmp_eq_u64 vcc, -1\ns_cbranch_scc0 {lab}_s\ns_branch {lab}_b")
            elif tok[0] == "m":
                a(f"s_waitcnt vmcnt({tok[1:]})")
            elif tok[0] == "s":
                st = int(tok[1])
            elif tok[0] == "e":
                for r in range(pos[st], pos[st] + int(tok[1:])):
                    a(f"v_exp_f32 v{SB[st][t & 1] + r}, v{SB[st][t & 1] + r}")
                pos[st] += int(tok[1:])
            elif tok == "Q":
                a(f"v_mfma_f32_32x32x16_bf16 {v(SB[st][(t + 1) & 1], 16)}, {v(KB[(t + 1) & 1], 4) + ', ' + v(Q[st], 4) if not swapqk else v(Q[st], 4) + ', ' + v(KB[(t + 1) & 1], 4)}, {'0' if cz else v(CB, 16)}")
            elif tok == "P0":
                a(f"v_smfmac_f32_32x32x32_bf16 {v(O[st], 16)}, {v(VB[t & 1], 4)}, {v(SB[st][t & 1], 8)}, v{IDX}")
            elif tok == "P1":
                a(f"v_smfmac_f32_32x32x32_bf16 {v(O[st], 16)}, {v(VB[(t - 1) & 1] + 4, 4)}, {v(SB[st][(t - 1) & 1] + 8, 8)}, v{IDX}")
            elif tok == "P2":
                a(f"v_smfmac_f32_32x32x32_bf16 {v(O[st], 16)}, {v(VB[t & 1] + 4, 4)}, {v(SB[st][t & 1] + 8, 8)}, v{IDX}")
            elif tok in ("Z0", "Z1"):
                tt, h = (t, 0) if tok == "Z0" else (t - 1, 1)
                a(f"v_smfmac_f32_32x32x32_bf16 {v(O[st], 16)}, {v(CB, 4)}, {v(SB[st][tt & 1] + 8 * h, 8)}, v{IDX}")
            elif tok in ("Y0", "Y1"):
                tt, h = (t, 0) if tok == "Y0" else (t - 1, 1)
                a(f"v_smfmac_f32_32x32x32_bf16 {v(O[st], 16)}, {v(VB[tt & 1] + 4 * h, 4)}, {v(CB, 8)}, v{IDX}")
            elif tok in ("D0", "D1"):
                tt, h = (t, 0) if tok == "D0" else (t - 1, 1)
                a(f"v_mfma_f32_32x32x16_bf16 {v(O[st], 16)}, {v(VB[tt & 1] + 4 * h, 4)}, {v(KB[tt & 1], 4)}, {v(O[st], 16)}")
            elif tok in ("C0", "C1"):
                tt, h = (t, 0) if tok == "C0" else (t - 1, 1)
                for r in range(4):
                    a(f"v_cvt_pk_bf16_f32 v{104 + 4 * h + r}, v{SB[st][tt & 1] + 8 * h + 2 * r}, v{SB[st][tt & 1] + 8 * h + 2 * r + 1}")
            elif tok in ("M0", "M1"):
                tt, h = (t, 0) if tok == "M0" else (t - 1, 1)
                a(f"v_mfma_f32_32x32x16_bf16 {v(O[st], 16)}, {v(VB[tt & 1] + 4 * h, 4)}, {v(104 + 4 * h, 4)}, {v(O[st], 16)}")
            elif tok[0] == "x":
                for r in range(pos[st], pos[st] + int(tok[1:])):
                    a(f"v_exp_f32 v{120 + r}, v{SB[st][t & 1] + r}")
                pos[st] += int(tok[1:])
            elif tok == "K":
                rdK(t + 2, (t + 2) * 2048)
            elif tok == "V":
                rdV(t + 1, (t + 1) * 2048)
            elif tok == "Vn":
                rdV(t + 1, (t + 1) * 2048, False)
            elif tok == "Xm":
                a("s_mov_b64 exec, s[20:21]")
            elif tok == "Xf":
                a("s_mov_b64 exec, -1")
            elif tok[0] == "w":
                a(f"s_waitcnt lgkmcnt({tok[1:]})")
            elif tok[0] == "n":
                a(f"s_nop {int(tok[1:]) - 1}")
            elif tok[0] == "q":
                a(f"s_setprio {3 - ((t - int(tok[1:])) & 3)}")
            elif tok[0] == "h":
                a(f"s_setprio {1 - ((t - int(tok[1:])) >> 1 & 1)}")
            elif tok == "pt":
                a(f"s_setprio {3 - (t & 3)}")
            elif tok[0] == "p":
                a(f"s_setprio {tok[1:]}")
            elif tok == "B":
                a("s_barrier")
            else:
                raise ValueError(tok)
    a(f"v_add_u32 v4, {2048 * unroll}, v4\nv_add_u32 v5, {2048 * unroll}, v5")
    a(f"s_add_u32 s25, s25, 1\ns_cmp_lt_u32 s25, {64 // unroll}\ns_cbranch_scc1 .Lloop_{name}")
    a("s_memrealtime s[44:45]\ns_memtime s[46:47]")
    a("s_waitcnt vmcnt(0) lgkmcnt(0)\ns_nop 15")
    a(f"s_lshl_b32 s24, s2, 3\ns_add_u32 s24, s24, s16\ns_lshl_b32 s24, s24, 5\ns_add_u32 s24, s24, {24 * MB + idx * 65536}")
    a("v_mov_b32 v4, 0")
    for i in range(4):
        a(f"v_mov_b32 v2, s{40 + 2 * i}\nv_mov_b32 v3, s{41 + 2 * i}")
        a(f"buffer_store_dwordx2 v[2:3], v4, s[4:7], s24 offen offset:{8 * i}\ns_nop 1")
    a(f".Lend_{name}:\ns_endpgm")
    for o in ool:
        a(o)
    return name, 256, nwaves * 64, 131072 + 16384, 160


BASE = "e2 P1 w2 e4 Q K e4 w1 P0 e2 V e4"
PRIO_HI = "s_cmp_ge_u32 s16, 4\ns_cbranch_scc0 .Lp_NAME\ns_setprio 1\n.Lp_NAME:"
VARS = eval(open(sys.argv[2]).read())

a = Asm()
a('.amdgcn_target "amdgcn-amd-amdhsa--gfx950"\n.text')
ks = []
for i, (nm, kw) in enumerate(VARS):
    ks.append(kernel(a, f"{nm}_kernel", i, **kw))
a('.section .rodata,"a"')
hdr = ""
for name, g, b, lds, nv in ks:
    a(f""".p2align 6
.amdhsa_kernel {name}
.amdhsa_next_free_vgpr {nv}
.amdhsa_next_free_sgpr 96
.amdhsa_accum_offset {(nv + 3) // 4 * 4}
.amdhsa_group_segment_fixed_size 0
.amdhsa_kernarg_size 72
.amdhsa_user_sgpr_count 2
.amdhsa_user_sgpr_kernarg_segment_ptr 1
.amdhsa_system_sgpr_workgroup_id_x 1
.amdhsa_float_denorm_mode_32 3
.end_amdhsa_kernel""")
    hdr += f"; @launch kernel={name} grid=({g},1,1) block=({b},1,1) lds={lds}\n"
txt = hdr + a.text()
for p in check(txt):
    print("HAZARD", p)
open(sys.argv[1], "w").write(txt)
```

```python
import sys, os
sys.path.insert(0, os.path.dirname(os.path.abspath(__file__)))
from asmlib import Asm, v, s, check

ONES = 0x3F803F80
MB = 1 << 20


def kernel(a, name, idx, sched, nwaves=8, streams=1, prio=None, unroll=4, cz=False, pre="", zrows=False, swapqk=False, span=32768, wgmask=15):
    a(f".globl {name}\n.p2align 8\n.type {name},@function\n{name}:")
    a(f"s_cmp_ge_u32 s2, 256\ns_cbranch_scc1 .Lend_{name}")
    a("s_load_dwordx2 s[4:5], s[0:1], 64\ns_mov_b32 s6, 0x2000000\ns_mov_b32 s7, 0x00020000")
    a("v_lshrrev_b32 v2, 6, v0\nv_and_b32 v1, 63, v0\nv_readfirstlane_b32 s16, v2")
    a("v_lshlrev_b32 v2, 4, v1")
    a("s_lshl_b32 s22, s16, 10\ns_mov_b32 s23, s22\ns_lshl_b32 s19, s16, 11\ns_add_u32 s19, s19, 0x100000")
    a("s_waitcnt lgkmcnt(0)")
    KB, VB, IDX = [12, 16], [20, 28], 6
    Q = [8, 100]
    SB = [[36, 52], [104, 120]]
    O = [68, 136]
    CB = 84
    for st in range(streams):
        a(f"buffer_load_dwordx4 {v(Q[st], 4)}, v2, s[4:7], s19 offen offset:{1024 * st}")
    for n in range(128 // nwaves):
        a(f"s_add_u32 m0, s22, {n * 1024 * nwaves}\ns_nop 0")
        a(f"buffer_load_dwordx4 v2, s[4:7], s23 offen lds")
        a(f"s_add_u32 s23, s23, {1024 * nwaves}")
    a("v_and_b32 v3, 15, v1\nv_lshlrev_b32 v3, 4, v3\nv_lshrrev_b32 v4, 5, v1\nv_lshl_add_u32 v3, v4, 8, v3")
    a("s_mov_b32 s20, 0xffff\ns_mov_b32 s21, 0xffff")
    a(f"v_mov_b32 v{IDX}, 0xdddddddd")
    for r in range(16):
        a(f"v_mov_b32 v{VB[0] + r}, {ONES:#x}")
        a(f"v_mov_b32 v{CB + r}, 0")
        for st in range(streams):
            a(f"v_mov_b32 v{O[st] + r}, 0\nv_mov_b32 v{SB[st][0] + r}, 0\nv_mov_b32 v{SB[st][1] + r}, 0")
    if zrows:
        a("s_mov_b32 s26, 0xfffe0000\ns_mov_b32 s27, 0xfffe0000\ns_mov_b64 exec, s[26:27]")
        for r in range(16):
            a(f"v_mov_b32 v{VB[0] + r}, 0")
        a("s_mov_b64 exec, -1")
    a("s_waitcnt vmcnt(0)\ns_barrier")
    if pre:
        a(pre.replace("NAME", name))
    ool = []
    a("v_mov_b32 v148, 0\ns_lshl_b32 s35, s16, 2\ns_add_u32 s35, s35, 0x23800\nv_mov_b32 v149, s35")
    a("v_and_b32 v151, 7, v1\nv_lshlrev_b32 v151, 2, v151\nv_add_u32 v151, 0x23800, v151\nds_write_b32 v149, v148\ns_mov_b32 s35, 0x4000")
    a("s_waitcnt lgkmcnt(0)\ns_barrier")
    a(f"s_mov_b32 s30, 0\ns_mov_b32 s31, {span - 1}\ns_and_b32 s33, s2, {wgmask}\ns_lshl_b32 s33, s33, 3\ns_add_u32 s33, s33, s16\ns_mul_i32 s33, s33, {span}")
    a("s_lshl_b32 s34, s16, 10\ns_add_u32 s34, s34, 0x21000")
    a("s_mov_b32 s8, s4\ns_or_b32 s9, s5, 0x100000\ns_mov_b32 s10, 0x2000000\ns_mov_b32 s11, 0x00820000")
    a("s_memrealtime s[40:41]\ns_memtime s[42:43]")

    def rdK(t, off):
        a(f"ds_read_b128 {v(KB[t & 1], 4)}, v4 offset:{off}")

    def rdV(t, off, ex=True):
        if ex:
            a("s_mov_b64 exec, s[20:21]")
        a(f"ds_read_b128 {v(VB[t & 1], 4)}, v5 offset:{off + 1024}")
        a(f"ds_read_b128 {v(VB[t & 1] + 4, 4)}, v5 offset:{off + 1536}")
        if ex:
            a("s_mov_b64 exec, -1")

    a("v_mov_b32 v4, v2\nv_mov_b32 v5, v3")
    rdK(0, 0)
    rdK(1, 2048)
    rdV(0, 0)
    a("s_mov_b32 s25, 0")
    a("s_waitcnt lgkmcnt(0)")
    a(f".Lloop_{name}:")
    for t in range(unroll):
        pos = [0] * streams
        st = 0
        for tok in sched.split():
            if "@" in tok:
                tok, tm = tok.split("@")
                hi_only = tm.endswith("h")
                lo_only = tm.endswith("l")
                tm = tm.rstrip("hl")
                if str(t & 3) not in tm:
                    continue
                if hi_only or lo_only:
                    lab = a.label("sk")
                    a(f"s_cmp_ge_u32 s16, 4\ns_cbranch_scc{0 if hi_only else 1} {lab}")
                    for _ in range(int(tok[1:] or 1)):
                        a("s_add_u32 s30, s30, 1024\ns_and_b32 s30, s30, s31\ns_add_u32 s32, s30, s33\ns_mov_b32 m0, s34\ns_nop 0")
                        a(f"buffer_load_dwordx4 v2, s[4:7], s32 offen sc1 lds")
                    a(f"{lab}:")
                    continue
            if tok[0] == "G":
                for _ in range(int(tok[1:] or 1)):
                    a("s_add_u32 s30, s30, 1024\ns_and_b32 s30, s30, s31\ns_add_u32 s32, s30, s33\ns_mov_b32 m0, s34\ns_nop 0")
                    a(f"buffer_load_dwordx4 v2, s[4:7], s32 offen sc1 lds")
            elif tok[0] == "T":
                for _ in range(int(tok[1:] or 1)):
                    a("s_add_u32 s30, s30, 1024\ns_and_b32 s30, s30, s31\ns_add_u32 s32, s30, s33\ns_mov_b32 m0, s34\ns_nop 0")
                    a(f"buffer_load_dwordx4 off, s[8:11], s32 sc1 lds")
            elif tok[0] == "R":
                for _ in range(int(tok[1:] or 1)):
                    a("s_add_u32 s30, s30, 1024\ns_and_b32 s30, s30, s31\ns_add_u32 s32, s30, s33")
                    a(f"buffer_load_dwordx4 v[144:147], v2, s[4:7], s32 offen sc1")
            elif tok == "A":
                a("v_add_u32 v148, 1, v148\ns_mov_b64 exec, 1\nds_write_b32 v149, v148\ns_mov_b64 exec, -1")
            elif tok == "Cr":
                a("ds_read_b32 v150, v151")
            elif tok[0:2] == "Cc":
                lab = a.label("ck")
                a(f"s_waitcnt lgkmcnt({tok[2:]})\nv_cmp_le_u32 vcc, v148, v150\ns_cmp_eq_u64 vcc, -1\ns_cbranch_scc0 {lab}_s\n{lab}_b:")
                ool.append(f"{lab}_s:\nds_read_b32 v150, v151\ns_sub_u32 s35, s35, 1\ns_cbranch_scc1 {lab}_b\ns_waitcnt lgkmcnt(0)\nv_cmp_le_u32 vcc, v148, v150\ns_cmp_eq_u64 vcc, -1\ns_cbranch_scc0 {lab}_s\ns_branch {lab}_b")
            elif tok[0] == "m":
                a(f"s_waitcnt vmcnt({tok[1:]})")
            elif tok[0] == "s":
                st = int(tok[1])
            elif tok[0] == "e":
                for r in range(pos[st], pos[st] + int(tok[1:])):
                    a(f"v_exp_f32 v{SB[st][t & 1] + r}, v{SB[st][t & 1] + r}")
                pos[st] += int(tok[1:])
            elif tok == "Q":
                a(f"v_mfma_f32_32x32x16_bf16 {v(SB[st][(t + 1) & 1], 16)}, {v(KB[(t + 1) & 1], 4) + ', ' + v(Q[st], 4) if not swapqk else v(Q[st], 4) + ', ' + v(KB[(t + 1) & 1], 4)}, {'0' if cz else v(CB, 16)}")
            elif tok == "P0":
                a(f"v_smfmac_f32_32x32x32_bf16 {v(O[st], 16)}, {v(VB[t & 1], 4)}, {v(SB[st][t & 1], 8)}, v{IDX}")
            elif tok == "P1":
                a(f"v_smfmac_f32_32x32x32_bf16 {v(O[st], 16)}, {v(VB[(t - 1) & 1] + 4, 4)}, {v(SB[st][(t - 1) & 1] + 8, 8)}, v{IDX}")
            elif tok == "P2":
                a(f"v_smfmac_f32_32x32x32_bf16 {v(O[st], 16)}, {v(VB[t & 1] + 4, 4)}, {v(SB[st][t & 1] + 8, 8)}, v{IDX}")
            elif tok in ("Z0", "Z1"):
                tt, h = (t, 0) if tok == "Z0" else (t - 1, 1)
                a(f"v_smfmac_f32_32x32x32_bf16 {v(O[st], 16)}, {v(CB, 4)}, {v(SB[st][tt & 1] + 8 * h, 8)}, v{IDX}")
            elif tok in ("Y0", "Y1"):
                tt, h = (t, 0) if tok == "Y0" else (t - 1, 1)
                a(f"v_smfmac_f32_32x32x32_bf16 {v(O[st], 16)}, {v(VB[tt & 1] + 4 * h, 4)}, {v(CB, 8)}, v{IDX}")
            elif tok in ("D0", "D1"):
                tt, h = (t, 0) if tok == "D0" else (t - 1, 1)
                a(f"v_mfma_f32_32x32x16_bf16 {v(O[st], 16)}, {v(VB[tt & 1] + 4 * h, 4)}, {v(KB[tt & 1], 4)}, {v(O[st], 16)}")
            elif tok in ("C0", "C1"):
                tt, h = (t, 0) if tok == "C0" else (t - 1, 1)
                for r in range(4):
                    a(f"v_cvt_pk_bf16_f32 v{104 + 4 * h + r}, v{SB[st][tt & 1] + 8 * h + 2 * r}, v{SB[st][tt & 1] + 8 * h + 2 * r + 1}")
            elif tok in ("M0", "M1"):
                tt, h = (t, 0) if tok == "M0" else (t - 1, 1)
                a(f"v_mfma_f32_32x32x16_bf16 {v(O[st], 16)}, {v(VB[tt & 1] + 4 * h, 4)}, {v(104 + 4 * h, 4)}, {v(O[st], 16)}")
            elif tok[0] == "x":
                for r in range(pos[st], pos[st] + int(tok[1:])):
                    a(f"v_exp_f32 v{120 + r}, v{SB[st][t & 1] + r}")
                pos[st] += int(tok[1:])
            elif tok == "K":
                rdK(t + 2, (t + 2) * 2048)
            elif tok == "V":
                rdV(t + 1, (t + 1) * 2048)
            elif tok == "Vn":
                rdV(t + 1, (t + 1) * 2048, False)
            elif tok == "Xm":
                a("s_mov_b64 exec, s[20:21]")
            elif tok == "Xf":
                a("s_mov_b64 exec, -1")
            elif tok[0] == "w":
                a(f"s_waitcnt lgkmcnt({tok[1:]})")
            elif tok[0] == "n":
                a(f"s_nop {int(tok[1:]) - 1}")
            elif tok == "pt":
                a(f"s_setprio {3 - (t & 3)}")
            elif tok[0] == "p":
                a(f"s_setprio {tok[1:]}")
            elif tok == "B":
                a("s_barrier")
            else:
                raise ValueError(tok)
    a(f"v_add_u32 v4, {2048 * unroll}, v4\nv_add_u32 v5, {2048 * unroll}, v5")
    a(f"s_add_u32 s25, s25, 1\ns_cmp_lt_u32 s25, {64 // unroll}\ns_cbranch_scc1 .Lloop_{name}")
    a("s_memrealtime s[44:45]\ns_memtime s[46:47]")
    a("s_waitcnt vmcnt(0) lgkmcnt(0)\ns_nop 15")
    a(f"s_lshl_b32 s24, s2, 3\ns_add_u32 s24, s24, s16\ns_lshl_b32 s24, s24, 5\ns_add_u32 s24, s24, {24 * MB + idx * 65536}")
    a("v_mov_b32 v4, 0")
    for i in range(4):
        a(f"v_mov_b32 v2, s{40 + 2 * i}\nv_mov_b32 v3, s{41 + 2 * i}")
        a(f"buffer_store_dwordx2 v[2:3], v4, s[4:7], s24 offen offset:{8 * i}\ns_nop 1")
    a(f".Lend_{name}:\ns_endpgm")
    for o in ool:
        a(o)
    return name, 256, nwaves * 64, 131072 + 16384, 160


BASE = "e2 P1 w2 e4 Q K e4 w1 P0 e2 V e4"
PRIO_HI = "s_cmp_ge_u32 s16, 4\ns_cbranch_scc0 .Lp_NAME\ns_setprio 1\n.Lp_NAME:"
VARS = eval(open(sys.argv[2]).read())

a = Asm()
a('.amdgcn_target "amdgcn-amd-amdhsa--gfx950"\n.text')
ks = []
for i, (nm, kw) in enumerate(VARS):
    ks.append(kernel(a, f"{nm}_kernel", i, **kw))
a('.section .rodata,"a"')
hdr = ""
for name, g, b, lds, nv in ks:
    a(f""".p2align 6
.amdhsa_kernel {name}
.amdhsa_next_free_vgpr {nv}
.amdhsa_next_free_sgpr 96
.amdhsa_accum_offset {(nv + 3) // 4 * 4}
.amdhsa_group_segment_fixed_size 0
.amdhsa_kernarg_size 72
.amdhsa_user_sgpr_count 2
.amdhsa_user_sgpr_kernarg_segment_ptr 1
.amdhsa_system_sgpr_workgroup_id_x 1
.amdhsa_float_denorm_mode_32 3
.end_amdhsa_kernel""")
    hdr += f"; @launch kernel={name} grid=({g},1,1) block=({b},1,1) lds={lds}\n"
txt = hdr + a.text()
for p in check(txt):
    print("HAZARD", p)
open(sys.argv[1], "w").write(txt)
```
